```python
import torch

def _softmax(x, axis=-1):
    return torch.softmax(x, dim=axis)
def _gelu(x):
    return torch.nn.functional.gelu(x, approximate="tanh")
def _silu(x):
    return torch.nn.functional.silu(x)
def _sigmoid(x):
    return torch.sigmoid(x)
def _layernorm(x, axis=-1, eps=1e-5):
    m = x.mean(dim=axis, keepdim=True)
    v = x.var(dim=axis, keepdim=True, unbiased=False)
    return (x - m) / torch.sqrt(v + eps)
def _scatter_add(tgt, idx, src, axis=0):
    return tgt.clone().index_add_(axis, idx, src)
def _segment_sum(src, seg, n):
    out = torch.zeros((n,) + src.shape[1:], dtype=src.dtype)
    return out.index_add_(0, seg, src)
def _pad(x, pw):
    flat = tuple(v for pair in reversed(pw) for v in pair)
    return torch.nn.functional.pad(x, flat)

kernel_name = 'sequential_preLN__compressed_kv_cla__moe_arch_mod__decode'

def setup_inputs():

    _w = (lambda a: (lambda t: t.to(torch.bfloat16) if t.is_floating_point() else t)(torch.as_tensor(a)))
    def _A_setup():
        B, H, Sq, Sk, D, M = 1, 32, 1, 8192, 128, 512
        Dc = 4 * D
        return {
            "x": _w((lambda *s: torch.randn(*s, dtype=torch.bfloat16) * 0.05)(B, Sq, M)),
            "c_kv": _w((lambda *s: torch.randn(*s, dtype=torch.bfloat16) * 0.4)(B, Sk, Dc)),
            "w_q": _w((lambda *s: torch.randn(*s, dtype=torch.bfloat16) * 3.2)(M, H, D) * (M ** -0.5)),
            "w_uk": _w((lambda *s: torch.randn(*s, dtype=torch.bfloat16) * 3.2)(Dc, H, D) * (Dc ** -0.5)),
            "w_uv": _w((lambda *s: torch.randn(*s, dtype=torch.bfloat16) * 0.4)(Dc, H, D) * (Dc ** -0.5)),
            "w_o": _w((lambda *s: torch.randn(*s, dtype=torch.bfloat16) * 0.4)(H, D, M) * ((H * D) ** -0.5)),
        }
    _A_in = _A_setup()

    def _B_setup():
        B, S, D, F, C = 1, 1, 512, 1376, 1
        return {
            "x": _w((lambda *s: torch.randn(*s, dtype=torch.bfloat16) * 0.05)(B, S, D)),
            "w_r": _w((lambda *s: torch.randn(*s, dtype=torch.bfloat16) * 0.1)(D)),
            "w_gate": _w((lambda *s: torch.randn(*s, dtype=torch.bfloat16) * 0.05)(D, F)),
            "w_up": _w((lambda *s: torch.randn(*s, dtype=torch.bfloat16) * 0.05)(D, F)),
            "w_down": _w((lambda *s: torch.randn(*s, dtype=torch.bfloat16) * 0.05)(F, D)),
        }
    _B_in = _B_setup()

    return {
        "A_x": _A_in["x"],
        "A_c_kv": _A_in["c_kv"],
        "A_w_q": _A_in["w_q"],
        "A_w_uk": _A_in["w_uk"],
        "A_w_uv": _A_in["w_uv"],
        "A_w_o": _A_in["w_o"],
        "B_x": _B_in["x"],
        "B_w_r": _B_in["w_r"],
        "B_w_gate": _B_in["w_gate"],
        "B_w_up": _B_in["w_up"],
        "B_w_down": _B_in["w_down"],
    }

def reference(A_x, A_c_kv, A_w_q, A_w_uk, A_w_uv, A_w_o, B_x, B_w_r, B_w_gate, B_w_up, B_w_down):
    def _A_ref(x, c_kv, w_q, w_uk, w_uv, w_o):
        B, Sq, M = x.shape[0], x.shape[1], x.shape[2]
        Sk = c_kv.shape[1]
        H, D = w_q.shape[1], w_q.shape[2]
        q = torch.einsum("bqm,mhd->bhqd", x, w_q)
        k = torch.einsum("bkc,chd->bhkd", c_kv, w_uk)
        v = torch.einsum("bkc,chd->bhkd", c_kv, w_uv)
        scores = torch.einsum("bhqd,bhkd->bhqk", q, k) * (D ** -0.5)
        off = Sk - Sq
        qi = torch.arange(Sq)[:, None]
        kj = torch.arange(Sk)[None, :]
        cmask = kj <= (qi + off)
        scores = torch.where(cmask[None, None], scores, -1e9)
        p = _softmax(scores, axis=-1)
        ctx = torch.einsum("bhqk,bhkd->bhqd", p, v)
        return torch.einsum("bhqd,hdm->bqm", ctx, w_o)

    def _B_ref(x, w_r, w_gate, w_up, w_down):
        B, S, D = x.shape
        C = 1
        r = x @ w_r
        idx = torch.argsort(-r, axis=-1)[:, :C]
        idx_e = (lambda x, n, axis: torch.repeat_interleave(x, n, dim=axis))(idx.reshape(B, C, 1), D, axis=2)
        x_sel = (lambda x, i, axis: torch.take_along_dim(x, i, dim=axis))(x, idx_e, axis=1)
        g = _silu(x_sel @ w_gate)
        u = x_sel @ w_up
        y = (g * u) @ w_down
        r_sel = _sigmoid((lambda x, i, axis: torch.take_along_dim(x, i, dim=axis))(r, idx, axis=1))
        y = y * r_sel.reshape(B, C, 1)
        b_off = (torch.arange(B) * S).reshape(B, 1)
        flat_idx = (idx + b_off).reshape(B * C)
        zero = (x * 0.0).reshape(B * S, D)
        upd = _scatter_add(zero, flat_idx, y.reshape(B * C, D), axis=0)
        return x + upd.reshape(B, S, D)

    x = A_x
    h = x + _A_ref(_layernorm(x, axis=-1), A_c_kv, A_w_q, A_w_uk, A_w_uv, A_w_o)
    h2 = h + _B_ref(_layernorm(h, axis=-1), B_w_r, B_w_gate, B_w_up, B_w_down)
    return h2
```

```python
import re

TRANS = ("v_exp_f32", "v_log_f32", "v_rcp_f32", "v_rsq_f32", "v_sqrt_f32", "v_sin_f32", "v_cos_f32")

def _regs(tok):
    tok = tok.strip()
    tok = tok.lstrip("-")
    m = re.fullmatch(r"abs\((.*)\)", tok) or re.fullmatch(r"\|(.*)\|", tok)
    if m:
        tok = m.group(1)
    m = re.fullmatch(r"([vsa])(\d+)", tok)
    if m:
        return {(m.group(1), int(m.group(2)))}
    m = re.fullmatch(r"([vsa])\[(\d+):(\d+)\]", tok)
    if m:
        return {(m.group(1), i) for i in range(int(m.group(2)), int(m.group(3)) + 1)}
    if tok in ("vcc", "vcc_lo", "vcc_hi"):
        return {("s", "vcc")}
    if tok == "m0":
        return {("s", "m0")}
    if tok in ("exec", "exec_lo", "exec_hi"):
        return {("s", "exec")}
    return set()

class Ins:
    def __init__(self, text):
        self.text = text
        body = text.split(";")[0].strip()
        parts = body.split(None, 1)
        self.op = parts[0]
        rest = parts[1] if len(parts) > 1 else ""
        rest_nobr = re.sub(r"quad_perm:\[[^\]]*\]", "quad_perm", rest)
        toks = [t.strip() for t in rest_nobr.split(",")] if rest_nobr else []
        self.mods = ""
        if toks:
            last = toks[-1].split(None, 1)
            toks[-1] = last[0]
            self.mods = last[1] if len(last) > 1 else ""
        self.ops = [_regs(t) for t in toks]
        op = self.op
        self.mfma = op.startswith("v_mfma")
        self.valu = op.startswith("v_") and not self.mfma
        self.salu = op.startswith("s_")
        self.vmem = op.startswith("buffer_") or op.startswith("global_")
        self.ds = op.startswith("ds_")
        self.dpp = op.endswith("_dpp")
        self.trans = any(op.startswith(t) for t in TRANS)
        self.perml = op.startswith("v_permlane")
        self.rdlane = op.startswith("v_readlane") or op.startswith("v_readfirstlane")
        self.dot = op.startswith("v_dot")
        self.ldsdma = self.vmem and re.search(r"\blds\b", self.mods) is not None
        allr = set().union(*self.ops) if self.ops else set()
        self.srcc = set()
        if self.mfma:
            self.w = self.ops[0]; self.ab = self.ops[1] | self.ops[2]; self.srcc = self.ops[3]
            self.r = self.ab | self.srcc
            self.passes = 8 if "32x32" in op else 4
        elif self.perml:
            self.w = allr; self.r = allr
        elif self.valu:
            self.w = set(self.ops[0]); self.r = set().union(*self.ops[1:]) if len(self.ops) > 1 else set()
            if op.startswith(("v_fmac", "v_dot2c", "v_writelane")) or self.dpp:
                self.r |= self.w
            if "_co_" in op:
                self.w |= self.ops[1]
        elif self.vmem:
            if "store" in op or self.ldsdma or "wbl2" in op or "atomic" in op:
                self.w = set(); self.r = allr
            else:
                self.w = self.ops[0]; self.r = set().union(*self.ops[1:])
        elif self.ds:
            if op.startswith(("ds_write", "ds_add", "ds_max")):
                self.w = set(); self.r = allr
            else:
                self.w = self.ops[0]; self.r = set().union(*self.ops[1:])
        else:
            if op.startswith(("s_cmp", "s_bitcmp", "s_cbranch", "s_branch", "s_waitcnt", "s_barrier", "s_nop", "s_endpgm", "s_setpc", "s_setprio", "s_sleep")):
                self.w = set(); self.r = allr
            else:
                self.w = self.ops[0] if self.ops else set(); self.r = set().union(*self.ops[1:]) if len(self.ops) > 1 else set()
        self.widestore = self.vmem and "store" in op and ("x3" in op or "x4" in op)
        self.sdata = self.ops[0] if self.widestore and op.startswith("buffer_") else set()
        self.slots = 1
        if op == "s_nop":
            self.slots = int(toks[0], 0) + 1

def need(p, c):
    n = 0
    pv = {x for x in p.w if x[0] != "s"}
    ps = {x for x in p.w if x[0] == "s"}
    if p.valu:
        if c.mfma and pv & c.r: n = max(n, 2)
        if c.dpp and pv & c.r: n = max(n, 2)
        if c.perml and pv & c.r: n = max(n, 2)
        if c.rdlane and pv & c.r: n = max(n, 1)
        if p.trans and (c.valu or c.mfma) and pv & c.r: n = max(n, 1)
        if c.valu and ps & c.r: n = max(n, 4 if (c.rdlane or c.op.startswith("v_writelane")) else 2)
        if c.vmem and ps & c.r: n = max(n, 5)
        if c.salu and ps & c.r and not c.op.startswith("s_cbranch"): n = max(n, 1)
        if p.dot and (pv & (c.r | c.w)):
            same_chain = c.op == p.op and not (pv & set().union(*c.ops[1:3]))
            if not same_chain: n = max(n, 3)
    if p.mfma:
        far = 8 if p.passes == 4 else 12
        if c.mfma:
            if pv & c.ab: n = max(n, far)
            if pv & c.srcc and not (c.srcc == pv and c.passes == p.passes): n = max(n, far - 2)
            if pv & c.w and not (c.srcc == pv): n = max(n, far)
        elif (c.valu or c.vmem or c.ds) and pv & (c.r | c.w): n = max(n, far)
        if c.valu and p.srcc & c.w: n = max(n, 3 if p.passes == 4 else 7)
    if p.salu and ("s", "m0") in p.w and (c.ldsdma or c.op.startswith("v_writelane")): n = max(n, 1)
    if p.widestore and p.sdata & c.w: n = max(n, 2)
    return n

class Asm:
    def __init__(self):
        self.lines = []
    def __call__(self, text):
        for ln in text.split("\n"):
            if ln.strip():
                self.lines.append(ln.strip())
    def finish(self):
        out = []; hist = []
        for ln in self.lines:
            body = ln.split(";")[0].strip()
            if not body or body.endswith(":") or body.startswith("."):
                out.append(ln if body.endswith(":") or body.startswith(".") else "    " + ln)
                continue
            c = Ins(ln)
            req = 0; dist = 0
            for p in reversed(hist):
                if dist >= 12: break
                req = max(req, need(p, c) - dist)
                dist += p.slots
            if req > 0:
                nop = Ins(f"s_nop {req-1}")
                out.append(f"    s_nop {req-1}"); hist.append(nop)
            out.append("    " + ln); hist.append(c)
            if c.op in ("s_branch", "s_endpgm", "s_setpc_b64"):
                hist = []
        return "\n".join(out) + "\n"
```

```python
import sys
sys.path.insert(0, "gen")
from asmlib import Asm

NAME = "sequential_preLN__compressed_kv_cla__moe_arch_mod__decode"
REF = f"cdna_kernels/{NAME}.s.ref"

WS_EPOCH = 0
WS_XP = 0x1000
WS_QA = 0x8000
WS_ST = 0x10000
WS_QP = 0x20000
WS_CP = 0x30000
WS_YP = 0x40000
WS_OP = 0x80000
WS_PROF = 0x400000
WS_SIZE = 0x500000

TB = 22528
LDS_SIZE = TB + 131072
L_XN, L_QV, L_WN, L_CC, L_CCP, L_RED2 = 0, 1024, 1280, 1536, 2048, 6144
L_Q, L_P, L_MX = 0, 16896, 20992
L_RED, L_H, L_RED3 = 0, 4096, 5120

SX, SA, SB, SC, SD, SWS, SR, SO = "s[4:7]", "s[8:11]", "s[12:15]", "s[16:19]", "s[20:23]", "s[24:27]", "s[28:31]", "s[32:35]"
sW, sXC, sRR, sH, sJ, sT, sM8, sM16 = "s36", "s37", "s38", "s39", "s40", "s41", "s42", "s43"
sSPIN = "s50"
DPPF = "row_mask:0xf bank_mask:0xf"
LOG2E = 0x3fb8aa3b
import struct
def f2u(x): return struct.unpack("<I", struct.pack("<f", x))[0]
SCALE2 = f2u((128 ** -0.5) * 1.4426950408889634)


def vr(a, n=4): return f"v[{a}:{a+n-1}]"


class Gen:
    def __init__(self, prof=False, nt="nt", spin=1 << 18):
        self.a = Asm(); self.prof = prof; self.nt = nt; self.spin = spin; self.nlab = 0

    def stamp(self, i):
        if self.prof:
            self.a(f"s_memrealtime s[{64+2*i}:{65+2*i}]")

    def srd(self, base, karg, size):
        self.a(f"s_load_dwordx2 s[{base}:{base+1}], s[0:1], {karg}")
        self.later.append(f"s_mov_b32 s{base+2}, {size}\ns_mov_b32 s{base+3}, 0x20000")

    def exit(self):
        self.a("s_branch L_exit" if self.prof else "s_endpgm")

    def mfma(self, d, a, b, first):
        self.a(f"v_mfma_f32_16x16x32_bf16 {vr(d)}, {vr(a)}, {vr(b)}, {'0' if first else vr(d)}")

    def wave_reduce(self, v, tmp, op):
        a = self.a
        for n in (8, 4, 2, 1):
            a(f"{op}_dpp v{v}, v{v}, v{v} row_ror:{n} {DPPF}")
        self.cross_rows(v, tmp, op)

    def cross_rows(self, v, tmp, op):
        a = self.a
        for sw in (16, 32):
            a(f"v_mov_b32 v{tmp}, v{v}\nv_permlane{sw}_swap_b32 v{v}, v{tmp}\n{op} v{v}, v{v}, v{tmp}")

    def round_bf16(self, v):
        self.a(f"v_cvt_pk_bf16_f32 v{v}, v{v}, v{v}\nv_and_b32 v{v}, 0xffff0000, v{v}")

    def poll(self, loads, regs, tagv, mask, t0, pre="", post=""):
        a = self.a; self.nlab += 1; L = f"L_poll{self.nlab}"
        a(f"s_mov_b32 {sSPIN}, {self.spin}\n{L}:")
        a(loads)
        a(f"s_sub_u32 {sSPIN}, {sSPIN}, 1\ns_cbranch_scc1 {L}_x\ns_waitcnt vmcnt(0)")
        n = len(regs) // 2
        for i in range(n):
            a(f"v_bitop3_b32 v{t0+i}, v{regs[2*i]}, v{regs[2*i+1]}, {tagv} bitop3:0x7e")
        if n == 4:
            a(f"v_or3_b32 v{t0}, v{t0}, v{t0+2}, v{t0+3}")
        a(f"v_bitop3_b32 v{t0}, v{t0}, {mask}, v{t0+1} bitop3:0xc8")
        a(f"v_cmp_ne_u32 vcc, 0, v{t0}\ns_cbranch_vccnz {L}\n{L}_x:\ns_waitcnt vmcnt(0)")

    def tags(self):
        self.a(f"""
        s_add_u32 {sT}, {sT}, 1
        s_bitset1_b32 {sT}, 31
        v_mov_b32 v10, {sT}
        s_and_b32 s44, {sT}, 1
        s_and_b32 s45, {sT}, 2
        s_lshl_b32 s45, s45, 15
        s_or_b32 s44, s44, s45
        v_mov_b32 v11, s44
        """)

    def gather64(self, v, f, bank):
        a = self.a
        for n in (4, 8):
            for i in range(4):
                a(f"v_add_f32_dpp v{v+i}, v{v+i}, v{v+i} row_ror:{n} {DPPF}")
        a(f"v_cvt_pk_bf16_f32 v{v+4}, v{v}, v{v+1}\nv_cvt_pk_bf16_f32 v{v+5}, v{v+2}, v{v+3}")
        for s in range(4):
            for k in range(2):
                a(f"v_mov_b32_dpp v{f+2*s+k}, v{v+4+k} quad_perm:[{s},{s},{s},{s}] row_mask:0xf bank_mask:{bank}")

    def final32(self, base, v):
        self.a(f"""
        ds_read2_b32 {vr(v,2)}, v19 offset0:0 offset1:32
        ds_read2_b32 {vr(v+2,2)}, v19 offset0:64 offset1:96
        s_waitcnt lgkmcnt(0)
        v_pk_add_f32 {vr(v,2)}, {vr(v,2)}, {vr(v+2,2)}
        v_add_f32 v{v}, v{v}, v{v+1}
        v_mov_b32 v{v+1}, v{v}
        v_permlane32_swap_b32 v{v}, v{v+1}
        v_add_f32 v{v}, v{v}, v{v+1}
        """)

    def team1(self):
        a = self.a; nt = self.nt
        self.later = []
        self.srd(4, 0, 1024); self.srd(8, 16, 1 << 22); self.srd(12, 24, 1 << 22); self.srd(24, 104, WS_SIZE)
        self.srd(16, 32, 1 << 22); self.srd(20, 40, 1 << 22)
        a("\n".join(self.later))
        a(f"""
        v_readfirstlane_b32 {sW}, v2
        v_and_b32 v2, 15, v1
        v_lshrrev_b32 v3, 4, v1
        v_lshlrev_b32 v9, 4, v1
        s_lshr_b32 s44, {sRR}, 2
        s_lshl_b32 {sH}, {sXC}, 2
        s_add_u32 {sH}, {sH}, s44
        s_and_b32 {sJ}, {sRR}, 3
        v_lshlrev_b32 v4, 1, v3
        v_xor_b32 v4, v4, v2
        v_lshlrev_b32 v4, 4, v4
        v_lshl_or_b32 v6, v3, 17, v4
        v_lshl_or_b32 v4, v3, 13, v4
        v_xor_b32 v5, 0x80, v4
        v_xor_b32 v7, 0x80, v6
        s_lshl_b32 s46, {sJ}, 20
        s_lshl_b32 s44, {sH}, 8
        s_add_u32 s46, s46, s44
        s_lshr_b32 s44, {sW}, 1
        s_and_b32 s45, {sW}, 1
        s_lshl_b32 s47, s44, 18
        s_lshl_b32 s48, s45, 15
        s_add_u32 s47, s47, s48
        s_add_u32 s47, s47, s46          ; w_q source
        s_lshl_b32 s48, {sW}, 17
        s_add_u32 s48, s48, s46
        s_lshl_b32 s49, s45, 19
        s_lshl_b32 s44, s44, 15
        s_add_u32 s49, s49, s44
        s_add_u32 s49, s49, s46
        s_lshl_b32 s51, {sW}, 12
        s_add_u32 s51, s51, {TB}
        v_and_b32 v18, 31, v1
        s_lshl_b32 s44, {sRR}, 6
        v_lshl_add_u32 v8, v18, 1, s44
        s_mov_b32 m0, s51
        s_waitcnt lgkmcnt(0)
        s_load_dword {sT}, s[24:25], {WS_EPOCH}
        buffer_load_dwordx4 v[20:23], v9, {SX}, 0 offen
        buffer_load_ushort v136, v8, {SX}, 0 offen
        """)
        for i in range(4):
            a(f"buffer_load_dwordx4 v{4+(i&1)}, {SA}, s47 offen offset:{i*1024} {nt} lds")
            if i < 3: a(f"s_add_u32 s47, s47, {8*8192-1024}")
        a(f"s_add_u32 m0, s51, 32768")
        for i in range(4):
            a(f"buffer_load_dwordx4 v{4+(i&1)}, {SB}, s48 offen offset:{i*1024} {nt} lds")
            if i < 3: a(f"s_add_u32 s48, s48, {4*8192-1024}")
        self.stamp(1)
        a(f"""
        s_mov_b32 {sM8}, 0xff
        s_mov_b32 {sM16}, 0x10001
        s_mov_b32 s52, 0x10001
        s_mov_b32 s53, 0x10001
        v_lshrrev_b32 v12, 2, v1
        v_and_b32 v13, 7, v12
        v_xor_b32 v13, {sW}, v13
        v_lshlrev_b32 v13, 5, v13
        v_lshl_or_b32 v13, v12, 8, v13
        v_and_b32 v14, 3, v1
        v_lshl_or_b32 v13, v14, 3, v13
        v_lshlrev_b32 v137, 6, v12
        v_lshl_or_b32 v137, v14, 3, v137
        v_add_u32 v137, s51, v137
        v_add_u32 v137, {3*32768}, v137
        v_add_u32 v12, {TB}, v13
        v_add_u32 v138, {2*32768}, v12
        v_and_b32 v13, 7, v2
        v_lshlrev_b32 v13, 1, v13
        v_xor_b32 v13, v13, v3
        v_lshlrev_b32 v13, 4, v13
        v_lshl_or_b32 v13, v2, 8, v13
        v_add_u32 v13, s51, v13
        v_xor_b32 v14, 64, v13
        v_xor_b32 v15, 0x80, v13
        v_xor_b32 v16, 0xc0, v13
        v_lshlrev_b32 v17, 4, v3
        s_lshl_b32 s44, {sJ}, 8
        v_add_u32 v19, s44, v17
        s_waitcnt vmcnt(9)
        """)
        for i in range(4):
            a(f"v_lshlrev_b32 v{24+2*i}, 16, v{20+i}\nv_and_b32 v{25+2*i}, 0xffff0000, v{20+i}")
        a("""
        v_add_f32 v32, v24, v25
        v_add_f32 v33, v26, v27
        v_add_f32 v34, v28, v29
        v_add_f32 v35, v30, v31
        v_add_f32 v32, v32, v33
        v_add_f32 v34, v34, v35
        v_add_f32 v32, v32, v34
        """)
        self.wave_reduce(32, 33, "v_add_f32")
        a("v_mul_f32 v32, 0x3b000000, v32\nv_mov_b32 v34, 0")
        for i in range(8):
            a(f"v_sub_f32 v33, v{24+i}, v32\nv_fmac_f32 v34, v33, v33")
        self.wave_reduce(34, 33, "v_add_f32")
        a("v_mul_f32 v34, 0x3b000000, v34")
        self.round_bf16(32); self.round_bf16(34)
        a(f"v_add_f32 v34, {hex(f2u(1e-5))}, v34")
        self.round_bf16(34)
        a("v_sqrt_f32 v34, v34")
        self.round_bf16(34)
        a("v_rcp_f32 v34, v34")
        for i in range(8):
            a(f"v_sub_f32 v{24+i}, v{24+i}, v32")
        for i in range(4):
            a(f"v_cvt_pk_bf16_f32 v{20+i}, v{24+2*i}, v{25+2*i}")
        for i in range(4):
            a(f"v_lshlrev_b32 v{24+2*i}, 16, v{20+i}\nv_and_b32 v{25+2*i}, 0xffff0000, v{20+i}")
        for i in range(8):
            a(f"v_mul_f32 v{24+i}, v{24+i}, v34")
        for i in range(4):
            a(f"v_cvt_pk_bf16_f32 v{20+i}, v{24+2*i}, v{25+2*i}")
        a(f"ds_write_b128 v9, v[20:23] offset:{L_XN}\ns_waitcnt lgkmcnt(0)")
        for t in range(4):
            a(f"ds_read_b128 {vr(32+4*t)}, v19 offset:{L_XN+64*t}")
        self.tags()
        a(f"""
        s_lshl_b32 s54, {sH}, 11
        s_lshl_b32 s44, {sJ}, 9
        s_lshl_b32 s45, {sW}, 6
        s_add_u32 s55, s54, s44
        s_add_u32 s55, s55, s45
        s_add_u32 s56, s55, {WS_CP}
        s_add_u32 s55, s55, {WS_QP}
        s_add_u32 s54, s54, {WS_QP}
        s_lshl_b32 s57, {sH}, 10
        s_lshl_b32 s44, {sJ}, 8
        s_lshl_b32 s45, {sW}, 5
        s_add_u32 s57, s57, s44
        s_add_u32 s57, s57, s45
        s_add_u32 s57, s57, {WS_QA}
        s_bitcmp1_b32 {sT}, 0
        s_cselect_b32 s58, 0, 0x10000
        s_bitcmp1_b32 {sT}, 1
        s_cselect_b32 s59, 0, 0x10000
        s_mov_b32 s60, 0x07060302
        v_lshlrev_b32 v139, 3, v3
        v_lshrrev_b32 v140, 5, v1
        v_lshlrev_b32 v141, 2, v140
        v_lshl_or_b32 v141, v18, 3, v141
        v_lshlrev_b32 v19, 9, v140
        v_lshl_or_b32 v19, v18, 2, v19
        v_add_u32 v19, {L_RED2}, v19
        """)
        self.stamp(2)
        a("s_waitcnt vmcnt(4)\ns_barrier")
        self.stamp(3)
        for t in range(4):
            for h in range(2):
                a(f"ds_read_b64_tr_b16 {vr(48+4*t+2*h,2)}, v12 offset:{t*8192+h*4096}")
        for t in range(4):
            a(f"s_waitcnt lgkmcnt({6-2*t})")
            self.mfma(112, 48+4*t, 32+4*t, t == 0)
        a("s_mov_b64 exec, s[52:53]")
        for i in range(4):
            a(f"v_bfi_b32 v{112+i}, {sM8}, v10, v{112+i}")
        a(f"buffer_store_dwordx4 v[112:115], v17, {SWS}, s55 offen sc1\ns_mov_b64 exec, -1")
        self.stamp(4)
        a(f"s_cmp_lg_u32 {sW}, 0\ns_cbranch_scc1 L_a2_other")
        self.poll(f"buffer_load_dwordx4 v[120:123], v9, {SWS}, s54 offen sc1\nbuffer_load_dwordx4 v[124:127], v9, {SWS}, s54 offen offset:1024 sc1",
                  list(range(120, 128)), "v10", sM8, 128)
        for t in range(4):
            a(f"ds_read_b128 {vr(64+4*t)}, v{13+t} offset:32768")
        a(f"""
        v_pk_add_f32 v[120:121], v[120:121], v[124:125]
        v_pk_add_f32 v[122:123], v[122:123], v[126:127]
        v_permlane32_swap_b32 v120, v122
        v_permlane32_swap_b32 v121, v123
        v_pk_add_f32 v[120:121], v[120:121], v[122:123]
        v_cvt_pk_bf16_f32 v120, v120, v121
        ds_write_b32 v141, v120 offset:{L_QV}
        s_waitcnt lgkmcnt(0)
        s_branch L_a2_join
        L_a2_other:
        s_waitcnt vmcnt(1)
        """)
        for t in range(4):
            a(f"ds_read_b128 {vr(64+4*t)}, v{13+t} offset:32768")
        a("L_a2_join:\ns_barrier")
        self.stamp(5)
        for t in range(4):
            a(f"ds_read_b128 {vr(32+4*t)}, v17 offset:{L_QV+64*t}")
        for t in range(4):
            a(f"s_waitcnt lgkmcnt({3-t})")
            self.mfma(112, 64+4*t, 32+4*t, t == 0)
        a(f"""
        s_mov_b64 exec, s[52:53]
        s_add_u32 m0, s51, 65536
        v_add_u32 v112, s58, v112
        v_add_u32 v113, s59, v113
        v_add_u32 v114, s58, v114
        v_add_u32 v115, s59, v115
        v_perm_b32 v112, v113, v112, s60
        v_perm_b32 v113, v115, v114, s60
        v_bfi_b32 v112, {sM16}, v11, v112
        v_bfi_b32 v113, {sM16}, v11, v113
        buffer_store_dwordx2 v[112:113], v139, {SWS}, s57 offen sc1
        s_mov_b64 exec, -1
        """)
        self.stamp(6)
        for i in range(4):
            a(f"buffer_load_dwordx4 v{6+(i&1)}, {SC}, s49 offen offset:{i*1024} {nt} lds")
            if i < 3: a(f"s_add_u32 s49, s49, {8192-1024}")
        a(f"""
        s_add_u32 m0, s51, {3*32768}
        v_bfe_u32 v4, v1, 2, 2
        v_lshl_or_b32 v4, v3, 4, v4
        v_and_b32 v5, 3, v1
        v_lshlrev_b32 v5, 4, v5
        v_lshl_or_b32 v4, v4, 10, v5
        s_lshl_b32 s47, {sXC}, 19
        s_lshl_b32 s44, {sW}, 16
        s_lshl_b32 s45, {sRR}, 6
        s_add_u32 s47, s47, s44
        s_add_u32 s47, s47, s45
        """)
        for i in range(4):
            a(f"buffer_load_dwordx4 v4, {SD}, s47 offen offset:{i*1024} {nt} lds")
            if i < 3: a(f"s_add_u32 s47, s47, {4*1024-1024}")
        a(f"""
        s_lshl_b32 s48, {sH}, 16
        s_lshl_b32 s44, {sJ}, 14
        s_lshl_b32 s45, {sW}, 11
        s_add_u32 s48, s48, s44
        s_add_u32 s48, s48, s45
        s_add_u32 s48, s48, {WS_OP}
        buffer_load_dwordx4 v[120:123], v9, {SWS}, s48 offen sc1
        buffer_load_dwordx4 v[124:127], v9, {SWS}, s48 offen offset:1024 sc1
        s_lshl_b32 s49, {sH}, 4
        s_add_u32 s49, s49, {WS_ST}
        v_lshlrev_b32 v142, 9, v1
        v_lshlrev_b32 v143, 2, v1
        s_lshl_b32 s44, {sW}, 5
        v_lshl_add_u32 v144, v3, 2, s44
        v_and_b32 v5, 1, v2
        v_cmp_eq_u32 vcc, 1, v5
        v_mov_b32 v5, 0xffff
        v_mov_b32 v6, 0xffff0000
        v_cndmask_b32 v5, v5, v6, vcc
        v_lshrrev_b32 v6, 1, v2
        """)
        for r in range(4):
            a(f"v_cmp_eq_u32 vcc, {r}, v6\nv_cndmask_b32 v{148+r}, 0, v5, vcc")
        a(f"""
        s_lshl_b32 s44, {sW}, 9
        v_lshl_add_u32 v145, v2, 5, s44
        v_add_u32 v145, v145, v17
        v_lshlrev_b32 v146, 3, v1
        s_lshr_b32 s44, {sW}, 1
        s_lshl_b32 s45, {sXC}, 2
        s_add_u32 s44, s44, s45
        s_lshl_b32 s61, s44, 11
        s_and_b32 s44, {sW}, 1
        s_lshl_b32 s44, s44, 8
        s_add_u32 s61, s61, s44
        s_add_u32 s61, s61, {WS_CP}
        v_bfe_u32 v147, v1, 2, 2
        v_lshlrev_b32 v147, 9, v147
        v_lshl_or_b32 v147, v3, 6, v147
        v_and_b32 v5, 3, v1
        v_lshl_or_b32 v147, v5, 4, v147
        s_lshl_b32 s44, {sW}, 7
        v_add_u32 v152, s44, v17
        s_lshl_b32 s62, {sXC}, 11
        s_lshl_b32 s44, {sRR}, 7
        s_add_u32 s62, s62, s44
        s_add_u32 s62, s62, {WS_XP}
        v_lshlrev_b32 v136, 16, v136
        s_cmp_eq_u32 {sXC}, 0
        s_cselect_b32 s44, -1, 0
        v_and_b32 v136, s44, v136
        s_waitcnt vmcnt(2)
        s_barrier
        """)
        self.stamp(7)
        for t in range(4):
            for h in range(2):
                a(f"ds_read_b64_tr_b16 {vr(80+4*t+2*h,2)}, v138 offset:{t*8192+h*4096}")
        a("s_waitcnt lgkmcnt(0)")
        for t in range(2):
            for ct in range(2):
                for h in range(2):
                    a(f"ds_read_b64_tr_b16 {vr(96+8*ct+4*t+2*h,2)}, v137 offset:{(2*t+h)*1024+ct*32}")
        a(f"s_cmp_lg_u32 {sW}, 0\ns_cbranch_scc1 L_c1_join")
        a(f"""
        s_mov_b32 {sSPIN}, {self.spin}
        L_pollst:
        buffer_load_dwordx4 v[128:131], v142, {SWS}, s49 offen sc1
        s_sub_u32 {sSPIN}, {sSPIN}, 1
        s_cbranch_scc1 L_pollst_x
        s_waitcnt vmcnt(0)
        v_bitop3_b32 v130, v128, v130, v10 bitop3:0x96
        v_bitop3_b32 v131, v129, v131, v10 bitop3:0x96
        v_or_b32 v130, v130, v131
        v_cmp_ne_u32 vcc, 0, v130
        s_cbranch_vccnz L_pollst
        L_pollst_x:
        s_waitcnt vmcnt(0)
        v_mov_b32 v130, v128
        """)
        self.wave_reduce(130, 131, "v_max_f32")
        a("v_sub_f32 v128, v128, v130\nv_exp_f32 v128, v128\nv_mul_f32 v129, v128, v129")
        self.wave_reduce(129, 131, "v_add_f32")
        a(f"""
        v_rcp_f32 v129, v129
        v_mul_f32 v128, v128, v129
        v_cvt_pk_bf16_f32 v128, v128, v128
        ds_write_b32 v143, v128 offset:{L_WN}
        L_c1_join:
        s_waitcnt lgkmcnt(0)
        s_barrier
        """)
        self.stamp(8)
        a(f"ds_read_b32 v132, v144 offset:{L_WN}\nds_read_b32 v133, v144 offset:{L_WN+16}\ns_waitcnt lgkmcnt(0)")
        for k in range(2):
            for r in range(4):
                a(f"v_and_b32 v{156+4*k+r}, v{132+k}, v{148+r}")
        self.poll(f"buffer_load_dwordx4 v[120:123], v9, {SWS}, s48 offen sc1\nbuffer_load_dwordx4 v[124:127], v9, {SWS}, s48 offen offset:1024 sc1",
                  list(range(120, 128)), "v11", sM16, 128)
        self.stamp(9)
        self.mfma(112, 156, 120, True); self.mfma(112, 160, 124, False)
        a(f"""
        s_mov_b32 exec_hi, 0
        ds_write_b128 v145, v[112:115] offset:{L_CCP}
        s_mov_b32 exec_hi, -1
        s_cmp_lg_u32 {sW}, 0
        s_waitcnt lgkmcnt(0)
        s_barrier
        s_cbranch_scc1 L_c1_join2
        """)
        for k in range(8):
            a(f"ds_read_b64 {vr(32+2*k,2)}, v146 offset:{L_CCP+512*k}")
        a(f"""
        s_waitcnt lgkmcnt(4)
        v_pk_add_f32 v[32:33], v[32:33], v[34:35]
        v_pk_add_f32 v[36:37], v[36:37], v[38:39]
        v_pk_add_f32 v[32:33], v[32:33], v[36:37]
        s_waitcnt lgkmcnt(0)
        v_pk_add_f32 v[40:41], v[40:41], v[42:43]
        v_pk_add_f32 v[44:45], v[44:45], v[46:47]
        v_pk_add_f32 v[32:33], v[32:33], v[40:41]
        v_pk_add_f32 v[32:33], v[32:33], v[44:45]
        v_cvt_pk_bf16_f32 v32, v32, v33
        ds_write_b32 v143, v32 offset:{L_CC}
        s_waitcnt lgkmcnt(0)
        L_c1_join2:
        s_barrier
        """)
        for t in range(4):
            a(f"ds_read_b128 {vr(32+4*t)}, v17 offset:{L_CC+64*t}")
        for t in range(4):
            a(f"s_waitcnt lgkmcnt({3-t})")
            self.mfma(112, 80+4*t, 32+4*t, t == 0)
        a("s_mov_b64 exec, s[52:53]")
        for i in range(4):
            a(f"v_bfi_b32 v{112+i}, {sM8}, v10, v{112+i}")
        a(f"buffer_store_dwordx4 v[112:115], v17, {SWS}, s56 offen sc1\ns_mov_b64 exec, -1")
        self.stamp(10)
        self.poll(f"buffer_load_dwordx4 v[120:123], v147, {SWS}, s61 offen sc1", list(range(120, 124)), "v10", sM8, 128)
        self.stamp(11)
        self.gather64(120, 32, "0xf")
        for t in range(2):
            for ct in range(2):
                self.mfma(164+4*ct, 96+8*ct+4*t, 32+4*t, t == 0)
        a(f"""
        s_mov_b64 exec, s[52:53]
        s_cmp_lg_u32 {sW}, 0
        ds_write_b128 v152, v[164:167] offset:{L_RED2}
        ds_write_b128 v152, v[168:171] offset:{L_RED2+64}
        s_mov_b64 exec, -1
        s_waitcnt lgkmcnt(0)
        s_barrier
        s_cbranch_scc1 L_t1_end
        """)
        self.final32(L_RED2, 32)
        a(f"""
        v_add_f32 v32, v32, v136
        s_mov_b32 exec_hi, 0
        v_bfi_b32 v32, {sM8}, v10, v32
        buffer_store_dword v32, v143, {SWS}, s62 offen sc1
        s_mov_b32 exec_hi, -1
        """)
        self.stamp(12)
        a("L_t1_end:")
        self.exit()

    def team2(self):
        a = self.a; nt = self.nt
        a("L_team2:")
        self.later = []
        self.srd(8, 8, 1 << 23); self.srd(24, 104, WS_SIZE); self.srd(12, 64, 512*2752); self.srd(16, 72, 512*2752)
        self.srd(20, 80, 1376*1024); self.srd(28, 56, 1024); self.srd(32, 88, 1024)
        a("\n".join(self.later))
        a(f"""
        v_readfirstlane_b32 {sW}, v2
        s_sub_u32 {sRR}, {sRR}, 16
        v_and_b32 v2, 15, v1
        v_lshrrev_b32 v3, 4, v1
        v_lshlrev_b32 v9, 4, v1
        s_lshr_b32 s44, {sRR}, 1
        s_lshl_b32 {sH}, {sXC}, 3
        s_add_u32 {sH}, {sH}, s44
        s_and_b32 {sJ}, {sRR}, 1
        v_lshlrev_b32 v4, 1, v3
        v_xor_b32 v4, v4, v2
        v_lshlrev_b32 v4, 4, v4
        v_lshl_or_b32 v4, v3, 10, v4
        v_xor_b32 v5, 0x80, v4
        s_lshl_b32 s47, {sH}, 17
        s_lshl_b32 s44, {sW}, 14
        s_add_u32 s47, s47, s44
        s_lshl_b32 s51, {sW}, 12
        s_add_u32 s51, s51, {TB}
        s_mov_b32 m0, s51
        s_waitcnt lgkmcnt(0)
        s_load_dword {sT}, s[24:25], {WS_EPOCH}
        """)
        for q in range(4):
            for i in range(4):
                a(f"buffer_load_dwordx4 v{4+(i&1)}, {SA}, s47 offen offset:{i*1024} {nt} lds")
                if i < 3: a(f"s_add_u32 s47, s47, {4*1024-1024}")
            if q < 3:
                a(f"s_sub_u32 s47, s47, {3*3072-256}\ns_add_u32 m0, s51, {32768*(q+1)}")
        self.stamp(1)
        a(f"""
        s_mov_b32 {sM8}, 0xff
        s_mov_b32 {sM16}, 0x10001
        s_lshl_b32 s54, {sJ}, 14
        s_lshl_b32 s44, {sW}, 11
        s_add_u32 s54, s54, s44
        s_add_u32 s54, s54, {WS_QA}
        s_mul_i32 s44, {sW}, 2112
        v_add_u32 v18, s44, v9
        s_waitcnt lgkmcnt(0)
        """)
        self.tags()
        qloads = f"buffer_load_dwordx4 v[24:27], v9, {SWS}, s54 offen sc1\nbuffer_load_dwordx4 v[28:31], v9, {SWS}, s54 offen offset:1024 sc1"
        qwrite = f"ds_write_b128 v18, v[24:27] offset:{L_Q}\nds_write_b128 v18, v[28:31] offset:{L_Q+1056}\ns_waitcnt lgkmcnt(0)\ns_barrier"
        a(f"s_cmp_ge_u32 {sW}, 4\ns_cbranch_scc1 L_pv")
        a(f"""
        v_and_b32 v13, 7, v2
        v_lshlrev_b32 v13, 1, v13
        v_xor_b32 v13, v13, v3
        v_lshlrev_b32 v13, 4, v13
        v_lshl_or_b32 v13, v2, 8, v13
        s_lshl_b32 s44, {sW}, 13
        s_add_u32 s44, s44, {TB}
        v_add_u32 v13, s44, v13
        v_xor_b32 v14, 64, v13
        v_xor_b32 v15, 0x80, v13
        v_xor_b32 v16, 0xc0, v13
        v_mul_u32_u24 v17, 1056, v2
        v_lshl_add_u32 v17, v3, 4, v17
        s_lshl_b32 s44, {sW}, 2
        v_lshlrev_b32 v20, 4, v2
        v_add_u32 v19, s44, v20
        s_lshl_b32 s44, {sW}, 10
        v_add_u32 v21, s44, v9
        s_mov_b32 s55, {hex(SCALE2)}
        s_lshl_b32 s56, {sH}, 9
        s_lshl_b32 s44, {sJ}, 8
        s_add_u32 s56, s56, s44
        s_add_u32 s56, s56, {WS_ST}
        v_mov_b32 v22, 0x3f803f80
        """)
        for q in range(4):
            a(f"s_waitcnt vmcnt({12-4*q})\ns_barrier")
            if q == 2:
                for t in range(4): a(f"v_add_u32 v{13+t}, 0x10000, v{13+t}")
            for t in range(4):
                for u in range(2):
                    a(f"ds_read_b128 {vr(64+((q*4+t)*2+u)*4)}, v{13+t} offset:{(q&1)*32768+u*4096}")
        self.stamp(2)
        self.poll(qloads, list(range(24, 32)), "v11", sM16, 32)
        self.stamp(3)
        a(qwrite)
        self.stamp(4)
        for t in range(8):
            a(f"ds_read_b128 {vr(192+4*t)}, v17 offset:{L_Q+64*t}")
        for t in range(16):
            if t < 8:
                a(f"ds_read_b128 {vr(192+4*(t+8))}, v17 offset:{L_Q+64*(t+8)}\ns_waitcnt lgkmcnt(8)")
            else:
                a(f"s_waitcnt lgkmcnt({15-t})")
            for u in range(2):
                self.mfma(40+4*u, 64+(t*2+u)*4, 192+4*t, t == 0)
        a("""
        v_max3_f32 v32, v40, v41, v42
        v_max3_f32 v32, v43, v44, v32
        v_max3_f32 v33, v45, v46, v47
        v_max_f32 v32, v32, v33
        """)
        self.cross_rows(32, 33, "v_max_f32")
        a(f"ds_write_b32 v19, v32 offset:{L_MX}\ns_waitcnt lgkmcnt(0)\ns_barrier")
        self.stamp(5)
        a(f"""
        ds_read_b128 v[32:35], v20 offset:{L_MX}
        s_waitcnt lgkmcnt(0)
        v_max3_f32 v32, v32, v33, v34
        v_max_f32 v32, v32, v35
        v_mul_f32 v36, s55, v32
        """)
        for i in range(8):
            a(f"v_fma_f32 v{40+i}, v{40+i}, s55, -v36")
        for i in range(8):
            a(f"v_exp_f32 v{40+i}, v{40+i}")
        for i in range(4):
            a(f"v_cvt_pk_bf16_f32 v{40+i}, v{40+2*i}, v{41+2*i}")
        a(f"""
        ds_write_b128 v21, v[40:43] offset:{L_P}
        s_cmp_lg_u32 {sW}, 0
        s_waitcnt lgkmcnt(0)
        s_barrier
        """)
        self.stamp(6)
        a("s_cbranch_scc1 L_b_done")
        for s in range(1, 4):
            a(f"ds_read_b128 {vr(40+4*s)}, v9 offset:{L_P+1024*s}")
        a("v_mov_b32 v37, 0")
        for i in range(16):
            if i and i % 4 == 0: a(f"s_waitcnt lgkmcnt({3-i//4})")
            a(f"v_dot2c_f32_bf16 v37, v{40+i}, v22")
        self.cross_rows(37, 33, "v_add_f32")
        a(f"""
        v_xor_b32 v38, v36, v10
        v_xor_b32 v39, v37, v10
        s_mov_b64 exec, 0xffff
        buffer_store_dwordx4 v[36:39], v9, {SWS}, s56 offen sc1
        s_mov_b64 exec, -1
        """)
        self.stamp(7)
        a("s_branch L_b_done")
        a("L_trsub:")
        for ct in range(8):
            for s in range(4):
                for h in range(2):
                    a(f"ds_read_b64_tr_b16 {vr(64+(ct*4+s)*4+2*h,2)}, v{48+ct} offset:{s*8192+h*4096}")
        a("s_setpc_b64 s[60:61]")
        a(f"""
        L_pv:
        s_sub_u32 s57, {sW}, 4
        v_lshrrev_b32 v12, 2, v1
        v_and_b32 v13, 7, v12
        v_lshlrev_b32 v13, 5, v13
        v_lshl_or_b32 v13, v12, 8, v13
        v_and_b32 v14, 3, v1
        v_lshl_or_b32 v13, v14, 3, v13
        s_lshl_b32 s44, s57, 15
        s_add_u32 s44, s44, {TB}
        v_add_u32 v48, s44, v13
        """)
        for ct in range(1, 8):
            a(f"v_xor_b32 v{48+ct}, {ct*32}, v48")
        a(f"""
        v_lshlrev_b32 v20, 4, v2
        v_lshl_or_b32 v20, v3, 18, v20
        s_lshl_b32 s55, {sJ}, 20
        s_lshl_b32 s44, s57, 14
        s_lshl_b32 s45, {sH}, 8
        s_add_u32 s55, s55, s44
        s_add_u32 s55, s55, s45
        s_add_u32 s55, s55, {WS_OP}
        s_add_u32 s56, s55, 0x10000
        s_add_u32 s58, s55, 0x20000
        s_add_u32 s59, s55, 0x30000
        """)
        for q in range(4):
            a(f"s_waitcnt vmcnt({12-4*q})\ns_barrier")
            if q < 3:
                a(f"s_cmp_lg_u32 s57, {q}\ns_cbranch_scc1 L_pv_s{q}\ns_call_b64 s[60:61], L_trsub\nL_pv_s{q}:")
        self.stamp(2)
        self.poll(qloads, list(range(24, 32)), "v11", sM16, 32)
        self.stamp(3)
        a(qwrite)
        a(f"s_cmp_lg_u32 s57, 3\ns_cbranch_scc1 L_pv_s3\ns_call_b64 s[60:61], L_trsub\nL_pv_s3:")
        a("s_waitcnt lgkmcnt(0)\ns_barrier\ns_barrier")
        self.stamp(6)
        for s in range(4):
            a(f"ds_read_b128 {vr(192+4*s)}, v9 offset:{L_P+1024*s}")
        def pack(pr):
            for r in range(4):
                a(f"v_cvt_pk_bf16_f32 v{240+4*r+pr}, v{208+8*pr+r}, v{212+8*pr+r}")
            for r in range(4):
                a(f"v_bfi_b32 v{240+4*r+pr}, {sM16}, v11, v{240+4*r+pr}")
        for pr in range(4):
            for s in range(4):
                if pr == 0: a(f"s_waitcnt lgkmcnt({3-s})")
                for k in range(2):
                    ct = 2*pr + k
                    self.mfma(208+4*ct, 192+4*s, 64+(ct*4+s)*4, s == 0)
            if pr > 0: pack(pr-1)
        pack(3)
        for r, so in enumerate(("s55", "s56", "s58", "s59")):
            a(f"buffer_store_dwordx4 {vr(240+4*r)}, v20, {SWS}, {so} offen sc1")
        self.stamp(7)
        a(f"""
        L_b_done:
        s_mul_i32 s46, {sXC}, 11
        s_add_u32 s46, s46, {sRR}
        s_cmp_ge_u32 {sRR}, 11
        s_cbranch_scc1 L_t2_end
        s_cmp_ge_u32 s46, 86
        s_cbranch_scc1 L_t2_end
        v_bfe_u32 v4, v1, 3, 2
        v_lshrrev_b32 v5, 5, v1
        v_bfe_u32 v6, v1, 1, 2
        v_lshl_or_b32 v6, v5, 2, v6
        v_lshl_or_b32 v6, v4, 4, v6
        v_mul_u32_u24 v6, 2752, v6
        v_and_b32 v4, 1, v1
        v_lshl_add_u32 v6, v4, 4, v6
        v_lshrrev_b32 v4, 3, v1
        v_and_b32 v7, 7, v1
        v_lshlrev_b32 v7, 4, v7
        v_lshl_or_b32 v7, v4, 10, v7
        s_mul_i32 s47, {sW}, {64*2752}
        s_lshl_b32 s44, s46, 5
        s_add_u32 s47, s47, s44
        s_add_u32 s48, s47, {8*2752-1024}
        s_lshl_b32 s49, s46, 14
        s_lshl_b32 s44, {sW}, 7
        s_add_u32 s49, s49, s44
        s_add_u32 s54, s49, {8*1024-1024}
        s_mul_i32 s51, {sW}, 6144
        s_add_u32 s51, s51, {TB}
        s_mov_b32 m0, s51
        v_lshl_add_u32 v8, v3, 5, s44
        s_barrier
        buffer_load_dwordx4 v[32:35], v8, {SR}, 0 offen
        buffer_load_dwordx4 v[36:39], v8, {SR}, 0 offen offset:16
        buffer_load_dwordx4 v6, {SB}, s47 offen {nt} lds
        buffer_load_dwordx4 v6, {SB}, s48 offen offset:1024 {nt} lds
        s_add_u32 m0, s51, 2048
        buffer_load_dwordx4 v6, {SC}, s47 offen {nt} lds
        buffer_load_dwordx4 v6, {SC}, s48 offen offset:1024 {nt} lds
        s_add_u32 m0, s51, 4096
        buffer_load_dwordx4 v7, {SD}, s49 offen {nt} lds
        buffer_load_dwordx4 v7, {SD}, s54 offen offset:1024 {nt} lds
        v_lshl_add_u32 v12, v1, 3, s51
        v_lshrrev_b32 v13, 2, v1
        v_and_b32 v14, 3, v1
        v_lshlrev_b32 v15, 3, v14
        v_lshl_or_b32 v13, v13, 7, v15
        v_add_u32 v13, s51, v13
        v_bfe_u32 v16, v1, 2, 2
        v_lshlrev_b32 v17, 11, v16
        v_lshl_or_b32 v17, v3, 6, v17
        v_lshl_or_b32 v17, v14, 4, v17
        s_lshl_b32 s55, {sW}, 8
        s_add_u32 s55, s55, {WS_XP}
        s_add_u32 s56, s55, 8192
        v_lshl_or_b32 v18, v3, 5, v15
        v_add_u32 v18, s44, v18
        s_lshl_b32 s45, {sW}, 9
        v_mul_u32_u24 v20, 48, v2
        v_lshl_add_u32 v20, v3, 4, v20
        v_add_u32 v20, s45, v20
        v_lshrrev_b32 v21, 3, v2
        v_mul_u32_u24 v21, 192, v21
        v_and_b32 v22, 1, v16
        v_lshl_add_u32 v21, v22, 6, v21
        v_lshl_add_u32 v21, v3, 4, v21
        v_lshl_add_u32 v21, v14, 2, v21
        v_mov_b32 v22, 128
        v_mov_b32 v23, 144
        v_cmp_eq_u32 vcc, 1, v14
        v_cndmask_b32 v22, v22, v23, vcc
        v_mov_b32 v23, 148
        v_cmp_eq_u32 vcc, 2, v14
        v_cndmask_b32 v22, v22, v23, vcc
        v_mov_b32 v23, 340
        v_cmp_eq_u32 vcc, 3, v14
        v_cndmask_b32 v22, v22, v23, vcc
        v_and_b32 v4, 31, v1
        v_mul_u32_u24 v23, {88*128}, v5
        v_lshl_add_u32 v23, v4, 2, v23
        s_mul_i32 s57, {sW}, {2*88*128}
        s_lshl_b32 s44, s46, 7
        s_add_u32 s57, s57, s44
        s_add_u32 s57, s57, {WS_YP}
        v_lshlrev_b32 v19, 9, v5
        v_lshl_or_b32 v19, v4, 2, v19
        v_add_u32 v19, {L_RED3}, v19
        s_mov_b32 s52, 0x00110011
        s_mov_b32 s53, 0x00110011
        s_mov_b32 s58, {hex(LOG2E | 0x80000000)}
        v_cmp_eq_u32 vcc, 4, v2
        v_mov_b32 v15, 0x3f803f80
        s_waitcnt vmcnt(6)
        """)
        for i in range(8):
            a(f"v_cndmask_b32 v{32+i}, v{32+i}, v15, vcc")
        a("s_waitcnt vmcnt(0)")
        self.stamp(8)
        for k in range(2):
            for t in range(2):
                for h in range(2):
                    a(f"ds_read_b64_tr_b16 {vr(64+8*k+4*t+2*h,2)}, v12 offset:{k*2048+t*1024+h*512}")
        for u in range(4):
            a(f"ds_read_b64_tr_b16 {vr(80+2*u,2)}, v13 offset:{4096+32*u}")
        self.poll(f"buffer_load_dwordx4 v[24:27], v17, {SWS}, s55 offen sc1\nbuffer_load_dwordx4 v[28:31], v17, {SWS}, s56 offen sc1",
                  list(range(24, 32)), "v10", sM8, 40)
        self.stamp(9)
        a("v_pk_add_f32 v[24:25], v[24:25], v[28:29]\nv_pk_add_f32 v[26:27], v[26:27], v[30:31]")
        self.gather64(24, 32, "0x1")
        a("s_waitcnt lgkmcnt(0)")
        for t in range(2):
            self.mfma(96, 32+4*t, 32+4*t, t == 0)
            self.mfma(88, 64+4*t, 32+4*t, t == 0)
            self.mfma(92, 72+4*t, 32+4*t, t == 0)
        a(f"""
        ds_write_b64 v18, v[28:29] offset:{L_H}
        s_mov_b64 exec, s[52:53]
        ds_write_b128 v20, v[96:99] offset:{L_RED+128}
        ds_write_b128 v20, v[88:91] offset:{L_RED}
        ds_write_b128 v20, v[92:95] offset:{L_RED+64}
        s_mov_b64 exec, -1
        s_waitcnt lgkmcnt(0)
        s_barrier
        """)
        for k in range(4):
            a(f"ds_read2st64_b32 {vr(48+2*k,2)}, v22 offset0:{4*k} offset1:{4*k+2}")
        for k in range(4):
            a(f"ds_read2st64_b32 {vr(40+2*k,2)}, v21 offset0:{4*k} offset1:{4*k+2}")
        a(f"""
        s_waitcnt lgkmcnt(4)
        v_pk_add_f32 v[48:49], v[48:49], v[50:51]
        v_pk_add_f32 v[52:53], v[52:53], v[54:55]
        v_pk_add_f32 v[48:49], v[48:49], v[52:53]
        v_add_f32 v48, v48, v49
        v_mul_f32 v49, 0x3b000000, v48
        s_waitcnt lgkmcnt(0)
        v_pk_add_f32 v[40:41], v[40:41], v[42:43]
        v_mov_b32_dpp v50, v49 quad_perm:[1,1,1,1] {DPPF}
        v_mov_b32_dpp v51, v49 quad_perm:[0,0,0,0] {DPPF}
        v_pk_add_f32 v[44:45], v[44:45], v[46:47]
        v_fma_f32 v51, -v50, v50, v51
        v_pk_add_f32 v[40:41], v[40:41], v[44:45]
        v_max_f32 v51, 0, v51
        v_add_f32 v40, v40, v41
        v_add_f32 v52, {hex(f2u(1e-5))}, v51
        v_rsq_f32 v52, v52
        v_mul_f32_dpp v41, v40, v50 row_ror:8 {DPPF}
        v_sub_f32 v40, v40, v41
        v_mul_f32 v40, v40, v52
        v_mul_f32 v41, s58, v40
        v_exp_f32 v41, v41
        v_mul_f32_dpp v42, v40, v40 row_ror:12 {DPPF}
        v_add_f32 v41, 1.0, v41
        v_rcp_f32 v41, v41
        v_mul_f32 v42, v42, v41
        v_mov_b32_dpp v43, v42 quad_perm:[1,1,3,3] {DPPF}
        v_cvt_pk_bf16_f32 v42, v42, v43
        v_mov_b32_dpp v44, v42 row_newbcast:0 {DPPF}
        v_mov_b32_dpp v45, v42 row_newbcast:2 {DPPF}
        """)
        for u in range(4):
            a(f"v_mfma_f32_16x16x16_bf16 {vr(100+4*u)}, v[44:45], {vr(80+2*u,2)}, 0")
        for u in range(1, 4):
            a(f"v_mov_b32_dpp v100, v{100+4*u} quad_perm:[0,1,2,3] row_mask:{hex(1<<u)} bank_mask:0xf")
        a(f"""
        v_bfi_b32 v100, {sM8}, v10, v100
        buffer_store_dword v100, v23, {SWS}, s57 offen sc1
        """)
        self.stamp(10)
        a(f"""
        s_cmp_ge_u32 {sRR}, 2
        s_cbranch_scc1 L_t2_end
        s_lshl_b32 s46, {sXC}, 1
        s_add_u32 s46, s46, {sRR}
        s_lshl_b32 s44, s46, 6
        v_lshl_add_u32 v8, v4, 1, s44
        ds_read_u16 v56, v8 offset:{L_H}
        v_mov_b32_dpp v53, v48 quad_perm:[2,2,2,2] {DPPF}
        v_mov_b32_dpp v54, v48 quad_perm:[3,3,3,3] {DPPF}
        v_fma_f32 v53, -v50, v54, v53
        v_mul_f32 v53, v53, v52
        v_mul_f32 v53, s58, v53
        v_exp_f32 v53, v53
        v_add_f32 v53, 1.0, v53
        v_rcp_f32 v53, v53
        """)
        self.round_bf16(50); self.round_bf16(51)
        a(f"v_add_f32 v51, {hex(f2u(1e-5))}, v51")
        self.round_bf16(51)
        a("v_sqrt_f32 v51, v51")
        self.round_bf16(51)
        a("v_rcp_f32 v51, v51\ns_waitcnt lgkmcnt(0)\nv_lshlrev_b32 v56, 16, v56\nv_sub_f32 v57, v56, v50")
        self.round_bf16(57)
        a("v_mul_f32 v57, v57, v51")
        self.round_bf16(57)
        a(f"""
        v_add_f32 v56, v56, v57           ; h + LayerNorm(h)
        s_mul_i32 s55, s46, {88*128}
        s_mul_i32 s44, {sW}, {11*128}
        s_add_u32 s55, s55, s44
        s_add_u32 s55, s55, {WS_YP}
        s_cmp_eq_u32 {sW}, 7
        s_cselect_b32 s60, {sM8}, 0xffffff
        s_mov_b32 s61, 0
        v_and_b32 v28, 0xff, v10
        v_mov_b32 v29, v28
        v_mov_b32 v30, v28
        v_mov_b32 v31, v28
        v_and_b32 v12, 7, v1
        v_and_b32 v13, 1, v3
        v_lshl_or_b32 v13, v13, 1, v5
        v_lshl_or_b32 v12, v12, 2, v13
        s_lshl_b32 s44, {sW}, 7
        v_lshl_add_u32 v12, v12, 2, s44
        """)
        self.poll(f"buffer_load_dwordx4 v[24:27], v9, {SWS}, s55 offen sc1\ns_mov_b64 exec, s[60:61]\nbuffer_load_dwordx4 v[28:31], v9, {SWS}, s55 offen offset:1024 sc1\ns_mov_b64 exec, -1",
                  list(range(24, 32)), "v10", sM8, 40)
        self.stamp(11)
        a("v_pk_add_f32 v[24:25], v[24:25], v[28:29]\nv_pk_add_f32 v[26:27], v[26:27], v[30:31]")
        for i in range(4):
            a(f"v_add_f32_dpp v{24+i}, v{24+i}, v{24+i} row_ror:8 {DPPF}")
        a(f"""
        v_permlane16_swap_b32 v24, v26
        v_permlane16_swap_b32 v25, v27
        v_pk_add_f32 v[24:25], v[24:25], v[26:27]
        v_permlane32_swap_b32 v24, v25
        v_add_f32 v24, v24, v25
        ds_write_b32 v12, v24 offset:{L_RED3}
        s_cmp_lg_u32 {sW}, 0
        s_waitcnt lgkmcnt(0)
        s_barrier
        s_cbranch_scc1 L_t2_end
        """)
        self.final32(L_RED3, 24)
        a(f"""
        v_fma_f32 v24, v24, v53, v56
        v_cvt_pk_bf16_f32 v24, v24, v24
        s_mov_b32 exec_hi, 0
        buffer_store_short v24, v8, {SO}, 0 offen
        s_cmp_lg_u32 s46, 0
        s_cbranch_scc1 L_t2_noep
        s_mov_b32 exec_lo, 1
        buffer_store_dword v10, v9, {SWS}, 0 offen offset:{WS_EPOCH} sc1
        L_t2_noep:
        s_mov_b64 exec, -1
        """)
        self.stamp(12)
        a("L_t2_end:")
        self.exit()

    def build(self):
        a = self.a
        if self.prof:
            for i in range(1, 16): a(f"s_mov_b32 s{64+2*i}, 0")
        self.stamp(0)
        a(f"""
        s_cmp_ge_u32 s2, 256
        s_cbranch_scc1 L_end
        v_lshrrev_b32 v2, 6, v0
        v_and_b32 v1, 63, v0
        s_and_b32 {sXC}, s2, 7
        s_lshr_b32 {sRR}, s2, 3
        s_cmp_ge_u32 s2, 128
        s_cbranch_scc1 L_team2
        """)
        self.team1()
        self.team2()
        if self.prof:
            a("L_exit:\ns_mov_b64 exec, -1\ns_waitcnt vmcnt(0)")
            self.stamp(15)
            a("s_waitcnt lgkmcnt(0)\nv_mov_b32 v4, 0")
            for i in range(16): a(f"v_writelane_b32 v4, s{64+2*i}, {i}")
            a(f"""
            s_lshl_b32 s44, s2, 3
            s_add_u32 s44, s44, {sW}
            s_lshl_b32 s44, s44, 6
            s_add_u32 s44, s44, {WS_PROF}
            v_lshlrev_b32 v5, 2, v1
            s_mov_b64 exec, 0xffff
            buffer_store_dword v4, v5, {SWS}, s44 offen
            """)
        a("L_end:\ns_endpgm")
        ref = open(REF).read()
        head = ref.split(f"{NAME}_kernel:\n")[0].replace("grid=(2,1,1) block=(256,1,1) lds=0", f"grid=(256,1,1) block=(512,1,1) lds={LDS_SIZE}")
        tail = ".section .rodata" + ref.split(".section .rodata")[1]
        return head + f"{NAME}_kernel:\n" + a.finish() + tail + "\n"


if __name__ == "__main__":
    open(f"cdna_kernels/{NAME}.s", "w").write(Gen().build())
    open("k_prof.s", "w").write(Gen(prof=True, spin=1 << 14).build())
```

```python
import sys, struct
sys.path.insert(0, "gen")
from asmlib import Asm

NAME = "sequential_preLN__compressed_kv_cla__moe_arch_mod__decode"
REF = f"cdna_kernels/{NAME}.s.ref"

WS_EPOCH = 0
WS_XP = 0x1000
WS_QA = 0x8000
WS_ST = 0x10000
WS_QP = 0x20000
WS_CP = 0x30000
WS_YP = 0x40000
WS_FAR = 0x40000
WS_OP = 0x80000
WS_PROF = 0x400000
WS_SIZE = 0x500000
YROWS, NF = 48, 43

TB = 22528
LDS_SIZE = TB + 131072
L_XN, L_QV, L_QA = 0, 1024, 1280
L_RED2 = 2048
L_RED, L_STAT, L_H, L_ACT, L_RED3 = 2048, 6144, 6400, 7424, 7680
L_Q, L_P, L_MX, L_WN, L_CC = 0, 16896, 20992, 21248, 21504
L_CCP = 0

SX, SA, SB, SC, SD, SWS, SR, SO = "s[4:7]", "s[8:11]", "s[12:15]", "s[16:19]", "s[20:23]", "s[24:27]", "s[28:31]", "s[32:35]"
sW, sXC, sRR, sH, sJ, sT, sM8, sM16 = "s36", "s37", "s38", "s39", "s40", "s41", "s42", "s43"
sSPIN = "s50"
vT8, vT16, vT16n, vT32 = "v10", "v11", "v23", "v22"
DPPF = "row_mask:0xf bank_mask:0xf"
LOG2E = 0x3fb8aa3b
def f2u(x): return struct.unpack("<I", struct.pack("<f", x))[0]
SCALE2 = f2u((128 ** -0.5) * 1.4426950408889634)
EPS = hex(f2u(1e-5))


def vr(a, n=4): return f"v[{a}:{a+n-1}]"


class Gen:
    def __init__(self, prof=False, nt="nt", spin=1 << 18, pace=1, qsleep=0, gsleep=2, near=64, gate1=1, helper=1, stagger=1, obar=1, osleep=0):
        self.a = Asm(); self.prof = prof; self.nt = nt; self.spin = spin; self.nlab = 0
        self.pace = pace; self.qsleep = qsleep; self.gsleep = gsleep; self.near = near; self.gate1 = gate1; self.helper = helper; self.stagger = stagger; self.obar = obar; self.osleep = osleep

    def stamp(self, i):
        if self.prof:
            self.a(f"s_memrealtime s[{64+2*i}:{65+2*i}]")

    def ptr(self, base, karg):
        self.a(f"s_load_dwordx2 s[{base}:{base+1}], s[0:1], {karg}")

    def srd(self, base, size):
        self.a(f"s_mov_b32 s{base+2}, {size}\ns_mov_b32 s{base+3}, 0x20000")

    def exit(self):
        self.a("s_branch L_exit" if self.prof else "s_endpgm")

    def mfma(self, d, a, b, first):
        self.a(f"v_mfma_f32_16x16x32_bf16 {vr(d)}, {vr(a)}, {vr(b)}, {'0' if first else vr(d)}")

    def wave_reduce(self, v, tmp, op):
        for n in (8, 4, 2, 1):
            self.a(f"{op}_dpp v{v}, v{v}, v{v} row_ror:{n} {DPPF}")
        self.cross_rows(v, tmp, op)

    def cross_rows(self, v, tmp, op):
        for sw in (16, 32):
            self.a(f"v_mov_b32 v{tmp}, v{v}\nv_permlane{sw}_swap_b32 v{v}, v{tmp}\n{op} v{v}, v{v}, v{tmp}")

    def round_bf16(self, v):
        self.a(f"v_cvt_pk_bf16_f32 v{v}, v{v}, v{v}\nv_and_b32 v{v}, 0xffff0000, v{v}")

    def spin_head(self, loads, far=None, first=None):
        self.nlab += 1; L = f"L_poll{self.nlab}"
        self.a(f"s_mov_b32 {sSPIN}, {self.spin}")
        if first is not None:
            self.a(loads); self.a(first); self.a(f"s_branch {L}_w")
        self.a(f"{L}:")
        self.a(loads)
        if first is not None:
            self.a(f"{L}_w:")
        if far:
            self.a(f"s_cmp_eq_u32 {sSPIN}, {self.spin - self.near}\ns_cselect_b32 s44, {WS_FAR}, 0\ns_add_u32 {far}, {far}, s44")
        self.a(f"s_sub_u32 {sSPIN}, {sSPIN}, 1\ns_cbranch_scc1 {L}_x\ns_waitcnt vmcnt(0)")
        return L

    def spin_tail(self, L, sleep):
        if sleep:
            self.a(f"s_cbranch_vccz {L}_x\ns_sleep {sleep}\ns_branch {L}\n{L}_x:")
        else:
            self.a(f"s_cbranch_vccnz {L}\n{L}_x:")

    def poll(self, loads, regs, kind, t, sleep=0, far=None, first=None):
        a = self.a; L = self.spin_head(loads, far, first)
        tag, mask = (vT8, sM8) if kind == "f32" else (vT16n, sM16)
        for r in regs:
            a(f"v_xor_b32 v{r}, v{r}, {tag}")
        op3 = "v_or3_b32 v{0}, v{1}, v{2}, v{3}" if kind == "f32" else "v_bitop3_b32 v{0}, v{1}, v{2}, v{3} bitop3:0x80"
        a(op3.format(t, regs[0], regs[1], regs[2]))
        for i in range(3, len(regs) - 1, 2):
            a(op3.format(t, t, regs[i], regs[i+1]))
        if kind == "f32":
            a(f"v_bitop3_b32 v{t}, v{t}, {mask}, v{regs[-1]} bitop3:0xc8\nv_cmp_ne_u32 vcc, 0, v{t}")
        else:
            a(f"v_bitop3_b32 v{t}, v{t}, {mask}, v{regs[-1]} bitop3:0x80\nv_cmp_ne_u32 vcc, {mask}, v{t}")
        self.spin_tail(L, sleep)

    def poll_st(self, voff, soff, d, sleep=0, extra=""):
        L = self.spin_head(f"buffer_load_dwordx4 {vr(d)}, {voff}, {SWS}, {soff} offen sc1\n{extra}")
        self.a(f"""
        v_bitop3_b32 v{d+2}, v{d}, v{d+2}, {vT32} bitop3:0x96
        v_bitop3_b32 v{d+3}, v{d+1}, v{d+3}, {vT32} bitop3:0x96
        v_or_b32 v{d+2}, v{d+2}, v{d+3}
        v_cmp_ne_u32 vcc, 0, v{d+2}
        """)
        self.spin_tail(L, sleep)

    def tags(self):
        self.a(f"""
        s_add_u32 {sT}, {sT}, 1
        s_bitset1_b32 {sT}, 31
        s_mov_b32 {sM8}, 0xff
        s_mov_b32 {sM16}, 0x10001
        v_mov_b32 {vT32}, {sT}
        s_and_b32 s44, {sT}, 1
        s_and_b32 s45, {sT}, 2
        s_lshl_b32 s45, s45, 15
        s_or_b32 s44, s44, s45
        v_and_b32 {vT8}, 0xff, {vT32}
        v_mov_b32 {vT16}, s44
        v_xor_b32 {vT16n}, 0x10001, {vT16}
        """)

    def gather64(self, v, f, keep=False):
        a = self.a
        for n in (4, 8):
            for i in range(4):
                a(f"v_add_f32_dpp v{v+i}, v{v+i}, v{v+i} row_ror:{n} {DPPF}")
        a(f"v_cvt_pk_bf16_f32 v{v+4}, v{v}, v{v+1}\nv_cvt_pk_bf16_f32 v{v+5}, v{v+2}, v{v+3}")
        for s in range(4):
            for k in range(2):
                if keep:
                    a(f"v_cndmask_b32_dpp v{f+2*s+k}, v{v+4+k}, v{f+2*s+k}, vcc quad_perm:[{s},{s},{s},{s}] {DPPF}")
                else:
                    a(f"v_mov_b32_dpp v{f+2*s+k}, v{v+4+k} quad_perm:[{s},{s},{s},{s}] {DPPF}")

    def rowsel(self, d, n=1):
        for u in range(1, 4):
            for k in range(n):
                self.a(f"v_mov_b32_dpp v{d+k}, v{d+4*u+k} quad_perm:[0,1,2,3] row_mask:{hex(1<<u)} bank_mask:0xf")

    def team1(self):
        a = self.a; nt = self.nt
        a("L_t1:")
        self.srd(8, 1 << 22); self.srd(4, 1024)
        a(f"""
        s_lshr_b32 s44, {sRR}, 2
        s_lshl_b32 {sH}, {sXC}, 2
        s_add_u32 {sH}, {sH}, s44
        s_and_b32 {sJ}, {sRR}, 3
        v_lshlrev_b32 v4, 1, v3
        v_xor_b32 v4, v4, v2
        v_lshlrev_b32 v4, 4, v4
        v_lshl_or_b32 v4, v3, 13, v4
        v_xor_b32 v5, 0x80, v4
        s_lshl_b32 s46, {sJ}, 20
        s_lshl_b32 s44, {sH}, 8
        s_add_u32 s46, s46, s44
        s_lshr_b32 s44, {sW}, 1
        s_and_b32 s45, {sW}, 1
        s_lshl_b32 s47, s44, 18
        s_lshl_b32 s48, s45, 15
        s_add_u32 s47, s47, s48
        s_add_u32 s47, s47, s46          ; w_q source
        s_lshl_b32 s48, {sW}, 17
        s_add_u32 s48, s48, s46
        s_lshl_b32 s51, {sW}, 12
        s_add_u32 s51, s51, {TB}
        s_mov_b32 m0, s51
        """)
        self.srd(12, 1 << 22); self.srd(24, WS_SIZE)
        a(f"""
        s_cmp_lg_u32 {sW}, 0
        s_waitcnt lgkmcnt(0)
        s_cbranch_scc1 L_t1_nox
        buffer_load_dwordx4 v[32:35], v9, {SX}, 0 offen
        L_t1_nox:
        """)
        for i in range(4):
            a(f"buffer_load_dwordx4 v{4+(i&1)}, {SA}, s47 offen offset:{i*1024} {nt} lds")
            if i < 3: a(f"s_add_u32 s47, s47, {8*8192-1024}")
        a(f"s_load_dword {sT}, s[24:25], {WS_EPOCH}\ns_add_u32 m0, s51, 32768\ns_cmp_lg_u32 {sW}, 0\ns_barrier\ns_cbranch_scc1 L_t1_noln")
        self.stamp(1)
        a("s_waitcnt vmcnt(4)")
        for i in range(4):
            a(f"v_lshlrev_b32 v{24+2*i}, 16, v{32+i}\nv_and_b32 v{25+2*i}, 0xffff0000, v{32+i}")
        a("""
        v_pk_add_f32 v[36:37], v[24:25], v[26:27]
        v_pk_add_f32 v[38:39], v[28:29], v[30:31]
        v_pk_add_f32 v[36:37], v[36:37], v[38:39]
        v_add_f32 v36, v36, v37
        """)
        self.wave_reduce(36, 37, "v_add_f32")
        a("v_mul_f32 v36, 0x3b000000, v36\nv_mov_b32 v38, 0")
        for i in range(8):
            a(f"v_sub_f32 v37, v{24+i}, v36\nv_fmac_f32 v38, v37, v37")
        self.wave_reduce(38, 37, "v_add_f32")
        a("v_mul_f32 v38, 0x3b000000, v38")
        self.round_bf16(36); self.round_bf16(38)
        a(f"v_add_f32 v38, {EPS}, v38")
        self.round_bf16(38)
        a("v_sqrt_f32 v38, v38")
        for i in range(8):
            a(f"v_sub_f32 v{24+i}, v{24+i}, v36")
        self.round_bf16(38)
        a("v_rcp_f32 v38, v38")
        for i in range(4):
            a(f"v_cvt_pk_bf16_f32 v{32+i}, v{24+2*i}, v{25+2*i}")
        for i in range(4):
            a(f"v_lshlrev_b32 v{24+2*i}, 16, v{32+i}\nv_and_b32 v{25+2*i}, 0xffff0000, v{32+i}")
        for i in range(8):
            a(f"v_mul_f32 v{24+i}, v{24+i}, v38")
        for i in range(4):
            a(f"v_cvt_pk_bf16_f32 v{32+i}, v{24+2*i}, v{25+2*i}")
        a(f"ds_write_b128 v9, v[32:35] offset:{L_XN}")
        self.stamp(2)
        a("L_t1_noln:")
        a(f"""
        s_mov_b32 s52, 0x10001
        s_mov_b32 s53, 0x10001
        v_lshrrev_b32 v12, 2, v1
        v_and_b32 v13, 7, v12
        v_xor_b32 v13, {sW}, v13
        v_lshlrev_b32 v13, 5, v13
        v_lshl_or_b32 v13, v12, 8, v13
        v_and_b32 v14, 3, v1
        v_lshl_or_b32 v13, v14, 3, v13
        v_add_u32 v12, {TB}, v13
        v_and_b32 v13, 7, v2
        v_lshlrev_b32 v13, 1, v13
        v_xor_b32 v13, v13, v3
        v_lshlrev_b32 v13, 4, v13
        v_lshl_or_b32 v13, v2, 8, v13
        v_add_u32 v13, s51, v13
        v_xor_b32 v14, 64, v13
        v_xor_b32 v15, 0x80, v13
        v_xor_b32 v16, 0xc0, v13
        v_lshlrev_b32 v17, 4, v3
        s_lshl_b32 s44, {sJ}, 8
        v_add_u32 v19, s44, v17
        s_lshl_b32 s54, {sH}, 11
        s_lshl_b32 s44, {sJ}, 9
        s_lshl_b32 s45, {sW}, 6
        s_add_u32 s54, s54, {WS_QP}
        s_add_u32 s55, s54, s44
        s_add_u32 s55, s55, s45
        s_add_u32 s56, s55, {WS_FAR}
        s_lshl_b32 s57, {sH}, 10
        s_lshl_b32 s44, {sJ}, 8
        s_lshl_b32 s45, {sW}, 5
        s_add_u32 s57, s57, s44
        s_add_u32 s57, s57, {WS_QA}
        s_mov_b32 s60, 0x07060302
        v_lshl_add_u32 v20, v3, 3, s45
        v_lshlrev_b32 v29, 2, v1
        v_and_b32 v18, 31, v1
        v_lshrrev_b32 v21, 5, v1
        v_lshlrev_b32 v6, 2, v21
        v_lshl_or_b32 v6, v18, 3, v6
        """)
        for i in range(4):
            a(f"buffer_load_dwordx4 v{4+(i&1)}, {SB}, s48 offen offset:{i*1024} {nt} lds")
            if i < 3: a(f"s_add_u32 s48, s48, {4*8192-1024}")
        a("s_waitcnt lgkmcnt(0)")
        self.tags()
        a("s_waitcnt vmcnt(4)\ns_barrier")
        self.stamp(3)
        for t in range(4):
            a(f"ds_read_b128 {vr(32+4*t)}, v19 offset:{L_XN+64*t}")
            for h in range(2):
                a(f"ds_read_b64_tr_b16 {vr(48+4*t+2*h,2)}, v12 offset:{t*8192+h*4096}")
        for t in range(4):
            a(f"s_waitcnt lgkmcnt({9-3*t})")
            self.mfma(112, 48+4*t, 32+4*t, t == 0)
        a(f"s_mov_b64 exec, s[52:53]\ns_cmp_lg_u32 {sW}, 0")
        for i in range(4):
            a(f"v_bfi_b32 v{112+i}, {sM8}, {vT8}, v{112+i}")
        a(f"buffer_store_dwordx4 v[112:115], v17, {SWS}, s55 offen\nbuffer_store_dwordx4 v[112:115], v17, {SWS}, s56 offen sc1\ns_mov_b64 exec, -1")
        self.stamp(4)
        a("s_cbranch_scc1 L_a2_other")
        self.poll(f"buffer_load_dwordx4 v[120:123], v9, {SWS}, s54 offen sc1\nbuffer_load_dwordx4 v[124:127], v9, {SWS}, s54 offen offset:1024 sc1",
                  list(range(120, 128)), "f32", 128, far="s54")
        for t in range(4):
            a(f"ds_read_b128 {vr(64+4*t)}, v{13+t} offset:32768")
        a(f"""
        v_pk_add_f32 v[120:121], v[120:121], v[124:125]
        v_pk_add_f32 v[122:123], v[122:123], v[126:127]
        v_permlane32_swap_b32 v120, v122
        v_permlane32_swap_b32 v121, v123
        v_pk_add_f32 v[120:121], v[120:121], v[122:123]
        v_cvt_pk_bf16_f32 v120, v120, v121
        ds_write_b32 v6, v120 offset:{L_QV}
        s_waitcnt lgkmcnt(0)
        s_branch L_a2_join
        L_a2_other:
        s_waitcnt vmcnt(2)
        """)
        for t in range(4):
            a(f"ds_read_b128 {vr(64+4*t)}, v{13+t} offset:32768")
        a("L_a2_join:\ns_barrier")
        self.stamp(5)
        for t in range(4):
            a(f"ds_read_b128 {vr(32+4*t)}, v17 offset:{L_QV+64*t}")
        for t in range(4):
            a(f"s_waitcnt lgkmcnt({3-t})")
            self.mfma(116, 64+4*t, 32+4*t, t == 0)
        a(f"""
        s_mov_b64 exec, s[52:53]
        s_cmp_lg_u32 {sW}, 0
        v_perm_b32 v116, v117, v116, s60
        v_perm_b32 v117, v119, v118, s60
        ds_write_b64 v20, v[116:117] offset:{L_QA}
        s_mov_b64 exec, -1
        s_waitcnt lgkmcnt(0)
        s_barrier
        s_cbranch_scc1 L_qa_done
        ds_read_b32 v116, v29 offset:{L_QA}
        s_waitcnt lgkmcnt(0)
        v_bfi_b32 v116, {sM16}, {vT16}, v116
        buffer_store_dword v116, v29, {SWS}, s57 offen sc1
        """)
        self.stamp(6)
        if self.gate1: a("s_waitcnt vmcnt(0)")
        a(f"L_qa_done:\ns_cmp_ge_u32 {sRR}, 8\ns_cbranch_scc1 L_t1b")

    def team1a(self):
        a = self.a; nt = self.nt
        self.ptr(20, 40); self.srd(20, 1 << 22)
        a(f"""
        v_bfe_u32 v4, v1, 3, 2
        v_lshl_or_b32 v4, v21, 4, v4
        v_lshlrev_b32 v5, 1, v3
        v_and_b32 v7, 7, v1
        v_xor_b32 v5, v5, v7
        v_lshlrev_b32 v5, 4, v5
        v_lshl_or_b32 v4, v4, 10, v5
        s_lshl_b32 s47, {sXC}, 19
        s_lshl_b32 s44, {sW}, 16
        s_lshl_b32 s45, {sRR}, 7
        s_add_u32 s47, s47, s44
        s_add_u32 s47, s47, s45
        s_lshl_b32 s51, {sW}, 13
        s_add_u32 s51, s51, {TB+65536}
        s_mov_b32 m0, s51
        v_lshl_add_u32 v8, v1, 1, s45
        s_waitcnt lgkmcnt(0)
        s_barrier
        buffer_load_ushort v136, v8, {SX}, 0 offen
        """)
        for i in range(8):
            src = (32 * (i & 1) + 4 * (i >> 1)) * 1024 - (i & 3) * 1024
            if i == 4: a("s_add_u32 m0, s51, 4096")
            a(f"s_add_u32 s48, s47, {src}\nbuffer_load_dwordx4 v4, {SD}, s48 offen offset:{(i&3)*1024} {nt} lds")
        a(f"""
        v_lshrrev_b32 v12, 2, v1
        v_bfe_u32 v13, v1, 3, 2
        v_lshlrev_b32 v13, 5, v13
        v_lshl_or_b32 v13, v12, 7, v13
        v_and_b32 v14, 3, v1
        v_lshl_or_b32 v13, v14, 3, v13
        v_add_u32 v24, s51, v13
        v_xor_b32 v25, 32, v24
        v_xor_b32 v26, 64, v24
        v_xor_b32 v27, 0x60, v24
        s_lshr_b32 s44, {sW}, 1
        s_lshl_b32 s45, {sXC}, 2
        s_add_u32 s44, s44, s45
        s_lshl_b32 s61, s44, 11
        s_and_b32 s44, {sW}, 1
        s_lshl_b32 s44, s44, 8
        s_add_u32 s61, s61, s44
        s_add_u32 s61, s61, {WS_CP}
        v_bfe_u32 v28, v1, 2, 2
        v_lshlrev_b32 v28, 9, v28
        v_lshl_or_b32 v28, v3, 6, v28
        v_lshl_or_b32 v28, v14, 4, v28
        s_lshl_b32 s44, {sW}, 8
        v_add_u32 v30, s44, v29
        s_lshl_b32 s62, {sXC}, 11
        s_lshl_b32 s44, {sRR}, 8
        s_add_u32 s62, s62, s44
        s_add_u32 s62, s62, {WS_XP}
        s_lshl_b32 s49, {sXC}, 12
        s_add_u32 s49, s49, {WS_ST}
        v_mov_b32 v31, 0
        s_cmp_eq_u32 {sXC}, 0
        s_cselect_b32 s44, -1, 0
        s_waitcnt vmcnt(0)
        v_lshlrev_b32 v136, 16, v136
        v_and_b32 v136, s44, v136
        """)
        self.stamp(7)
        for ct in range(4):
            for t in range(2):
                for h in range(2):
                    a(f"ds_read_b64_tr_b16 {vr(64+8*ct+4*t+2*h,2)}, v{24+ct} offset:{(2*t+h)*2048}")
        a(f"s_cmp_lg_u32 {sW}, 0\ns_cbranch_scc1 L_c2_gate")
        self.poll_st("v31", "s49", 120, self.gsleep)
        a("L_c2_gate:\ns_waitcnt lgkmcnt(0)\ns_barrier")
        self.stamp(8)
        self.poll(f"buffer_load_dwordx4 v[120:123], v28, {SWS}, s61 offen sc1", list(range(120, 124)), "f32", 128, far="s61")
        self.stamp(9)
        self.gather64(120, 32)
        for t in range(2):
            for ct in range(4):
                self.mfma(96+4*ct, 32+4*t, 64+8*ct+4*t, t == 0)
        a(f"s_cmp_lg_u32 {sW}, 0")
        self.rowsel(96)
        a(f"""
        ds_write_b32 v30, v96 offset:{L_RED2}
        s_waitcnt lgkmcnt(0)
        s_barrier
        s_cbranch_scc1 L_t1a_end
        """)
        for k in range(4):
            a(f"ds_read2st64_b32 {vr(32+2*k,2)}, v29 offset0:{L_RED2//256+2*k} offset1:{L_RED2//256+2*k+1}")
        a(f"""
        s_waitcnt lgkmcnt(2)
        v_pk_add_f32 v[32:33], v[32:33], v[34:35]
        v_add_f32 v32, v32, v136
        s_waitcnt lgkmcnt(0)
        v_pk_add_f32 v[36:37], v[36:37], v[38:39]
        v_pk_add_f32 v[32:33], v[32:33], v[36:37]
        v_add_f32 v32, v32, v33
        v_bfi_b32 v32, {sM8}, {vT8}, v32
        buffer_store_dword v32, v29, {SWS}, s62 offen sc1
        """)
        self.stamp(10)
        a("L_t1a_end:")
        self.exit()

    def team1b(self):
        a = self.a; nt = self.nt
        a(f"""
        L_t1b:
        s_sub_u32 {sRR}, {sRR}, 8
        s_min_u32 s44, {sXC}, 3
        s_mul_i32 s46, {sXC}, 5
        s_add_u32 s46, s46, s44
        s_add_u32 s46, s46, {sRR}
        s_cmp_lt_u32 {sXC}, 3
        s_cselect_b32 s44, 6, 5
        s_cmp_ge_u32 {sRR}, s44
        s_cbranch_scc1 {"L_helper" if self.helper else "L_t1b_end"}
        s_and_b32 s63, s46, 1
        s_lshl_b32 s44, s63, 3
        s_add_u32 s45, s44, 64
        s_sub_u32 s44, 72, s44
        s_load_dwordx2 s[12:13], s[0:1], s45
        s_load_dwordx2 s[16:17], s[0:1], s44
        """)
        self.ptr(20, 80); self.ptr(28, 56); self.ptr(32, 88)
        self.srd(12, 512*2752); self.srd(16, 512*2752); self.srd(20, 1376*1024); self.srd(28, 1024); self.srd(32, 1024)
        a(f"""
        v_bfe_u32 v16, v1, 2, 2
        v_and_b32 v14, 3, v1
        v_lshl_or_b32 v4, v3, 4, v16
        v_mul_u32_u24 v4, 2752, v4
        v_lshl_add_u32 v4, v14, 4, v4
        v_lshrrev_b32 v5, 3, v1
        v_and_b32 v7, 7, v1
        v_lshlrev_b32 v7, 4, v7
        v_lshl_or_b32 v7, v5, 10, v7
        s_mul_i32 s47, {sW}, {64*2752}
        s_lshl_b32 s44, s46, 6
        s_add_u32 s47, s47, s44
        s_lshl_b32 s49, s46, 15
        s_lshl_b32 s59, {sW}, 7
        s_add_u32 s49, s49, s59
        s_mul_i32 s51, {sW}, 12288
        s_add_u32 s51, s51, {TB}
        s_lshl_b32 s63, s63, 12
        s_add_u32 m0, s51, s63
        s_xor_b32 s63, s63, 4096
        v_lshl_add_u32 v8, v3, 5, s59
        s_waitcnt lgkmcnt(0)
        s_barrier
        buffer_load_dwordx4 v[32:35], v8, {SR}, 0 offen
        buffer_load_dwordx4 v[36:39], v8, {SR}, 0 offen offset:16
        """)
        for i in range(4):
            a(f"s_add_u32 s48, s47, {i*(4*2752-1024)}\nbuffer_load_dwordx4 v4, {SB}, s48 offen offset:{i*1024} {nt} lds")
        a("s_add_u32 m0, s51, s63\ns_barrier")
        for i in range(4):
            a(f"s_add_u32 s48, s47, {i*(4*2752-1024)}\nbuffer_load_dwordx4 v4, {SC}, s48 offen offset:{i*1024} {nt} lds")
        a("s_add_u32 m0, s51, 8192\ns_barrier")
        for i in range(4):
            a(f"s_add_u32 s48, s49, {i*(8192-1024)}\nbuffer_load_dwordx4 v7, {SD}, s48 offen offset:{i*1024} {nt} lds")
        a(f"""
        v_lshrrev_b32 v12, 2, v1
        v_lshlrev_b32 v15, 3, v14
        v_lshl_or_b32 v12, v12, 6, v15
        v_add_u32 v12, s51, v12
        v_lshl_or_b32 v13, v3, 3, v16
        v_lshl_or_b32 v13, v13, 7, v15
        v_add_u32 v13, s51, v13
        v_lshlrev_b32 v19, 11, v16
        v_lshl_or_b32 v19, v3, 6, v19
        v_lshl_or_b32 v19, v14, 4, v19
        s_lshl_b32 s55, {sW}, 8
        s_add_u32 s55, s55, {WS_XP}
        s_add_u32 s56, s55, 8192
        v_lshl_or_b32 v20, v3, 5, v15
        v_add_u32 v20, s59, v20
        v_lshlrev_b32 v6, 3, v1
        s_lshl_b32 s44, {sW}, 9
        v_add_u32 v41, s44, v6
        s_lshl_b32 s44, {sW}, 5
        v_add_u32 v42, s44, v9
        v_mov_b32 v43, 0
        v_lshlrev_b32 v44, 1, v18
        v_mul_u32_u24 v45, {YROWS*128}, v21
        v_lshl_add_u32 v45, v18, 2, v45
        s_mul_i32 s57, {sW}, {2*YROWS*128}
        s_lshl_b32 s44, s46, 7
        s_add_u32 s57, s57, s44
        s_add_u32 s57, s57, {WS_YP}
        s_mov_b32 s58, {hex(LOG2E | 0x80000000)}
        s_mov_b32 s52, 0xeeeeeeee
        s_mov_b32 s53, 0xeeeeeeee
        s_lshl_b32 s61, {sXC}, 13
        s_add_u32 s61, s61, {WS_CP+WS_FAR}
        v_cmp_eq_u32 vcc, 1, v14
        v_mov_b32 v15, 0x3f803f80
        s_waitcnt vmcnt(12)
        """)
        for i in range(8):
            a(f"v_cndmask_b32 v{32+i}, v{32+i}, v15, vcc")
        a("s_waitcnt vmcnt(0)")
        self.stamp(7)
        for k in range(2):
            for ct in range(2):
                for t in range(2):
                    for h in range(2):
                        a(f"ds_read_b64_tr_b16 {vr(64+16*k+8*ct+4*t+2*h,2)}, v12 offset:{k*4096+(2*t+h)*1024+ct*32}")
        for u in range(4):
            for h in range(2):
                a(f"ds_read_b64_tr_b16 {vr(96+4*u+2*h,2)}, v13 offset:{8192+h*512+32*u}")
        a(f"s_cmp_lg_u32 {sW}, 0\ns_cbranch_scc1 L_d_gate")
        self.poll(f"buffer_load_dwordx4 v[24:27], v43, {SWS}, s61 offen sc1", list(range(24, 28)), "f32", 40, self.gsleep)
        a("L_d_gate:\ns_waitcnt lgkmcnt(0)\ns_barrier")
        self.stamp(8)
        self.poll(f"buffer_load_dwordx4 v[24:27], v19, {SWS}, s55 offen sc1\nbuffer_load_dwordx4 v[28:31], v19, {SWS}, s56 offen sc1",
                  list(range(24, 32)), "f32", 40)
        self.stamp(9)
        a("s_mov_b64 vcc, s[52:53]\nv_pk_add_f32 v[24:25], v[24:25], v[28:29]\nv_pk_add_f32 v[26:27], v[26:27], v[30:31]")
        self.gather64(24, 32, keep=True)
        for t in range(2):
            self.mfma(128, 32+4*t, 32+4*t, t == 0)
            for u in range(4):
                self.mfma(112+4*u, 32+4*t, 64+8*u+4*t, t == 0)
        a(f"""
        ds_write_b64 v20, v[28:29] offset:{L_H}
        s_cmp_lg_u32 {sW}, 0
        s_mov_b64 exec, 3
        ds_write_b128 v42, v[128:131] offset:{L_STAT}
        s_mov_b64 exec, -1
        """)
        self.rowsel(112, 2)
        a(f"""
        ds_write_b64 v41, v[112:113] offset:{L_RED}
        s_waitcnt lgkmcnt(0)
        s_barrier
        s_cbranch_scc1 L_d_act
        """)
        for k in range(8):
            a(f"ds_read_b64 {vr(48+2*k,2)}, v43 offset:{L_STAT+32*k}")
        for k in range(7):
            a(f"ds_read_b64 {vr(112+2*k,2)}, v6 offset:{L_RED+512*k}")
        a(f"""
        s_waitcnt lgkmcnt(11)
        ds_read_b64 v[126:127], v6 offset:{L_RED+512*7}
        v_pk_add_f32 v[48:49], v[48:49], v[50:51]
        v_pk_add_f32 v[52:53], v[52:53], v[54:55]
        s_waitcnt lgkmcnt(8)
        v_pk_add_f32 v[56:57], v[56:57], v[58:59]
        v_pk_add_f32 v[60:61], v[60:61], v[62:63]
        v_pk_add_f32 v[48:49], v[48:49], v[52:53]
        v_pk_add_f32 v[56:57], v[56:57], v[60:61]
        v_pk_add_f32 v[48:49], v[48:49], v[56:57]
        v_mul_f32 v50, 0x3b000000, v49
        v_mul_f32 v51, 0x3b000000, v48
        s_waitcnt lgkmcnt(4)
        v_pk_add_f32 v[112:113], v[112:113], v[114:115]
        v_fma_f32 v51, -v50, v50, v51
        v_pk_add_f32 v[116:117], v[116:117], v[118:119]
        v_max_f32 v51, 0, v51
        v_pk_add_f32 v[112:113], v[112:113], v[116:117]
        v_add_f32 v52, {EPS}, v51
        s_waitcnt lgkmcnt(0)
        v_pk_add_f32 v[120:121], v[120:121], v[122:123]
        v_rsq_f32 v52, v52
        v_pk_add_f32 v[124:125], v[124:125], v[126:127]
        v_pk_add_f32 v[112:113], v[112:113], v[120:121]
        v_pk_add_f32 v[112:113], v[112:113], v[124:125]
        v_fma_f32 v112, -v50, v113, v112
        v_mul_f32 v112, v112, v52
        v_mul_f32 v114, s58, v112
        v_mov_b32 v113, v112
        v_exp_f32 v114, v114
        v_permlane32_swap_b32 v112, v113
        v_add_f32 v114, 1.0, v114
        v_rcp_f32 v114, v114
        v_mul_f32 v112, v112, v113
        v_mul_f32 v112, v112, v114
        v_cvt_pk_bf16_f32 v112, v112, v112
        s_mov_b32 exec_hi, 0
        ds_write_b16 v44, v112 offset:{L_ACT}
        s_mov_b32 exec_hi, -1
        s_waitcnt lgkmcnt(0)
        L_d_act:
        s_barrier
        ds_read_b128 v[24:27], v17 offset:{L_ACT}
        s_cmp_ge_u32 {sRR}, 2
        s_waitcnt lgkmcnt(0)
        """)
        for u in range(4):
            self.mfma(112+4*u, 24, 96+4*u, True)
        self.rowsel(112)
        a(f"""
        v_bfi_b32 v112, {sM8}, {vT8}, v112
        buffer_store_dword v112, v45, {SWS}, s57 offen sc1
        """)
        self.stamp(10)
        a(f"""
        s_cbranch_scc1 L_t1b_end
        s_lshl_b32 s46, {sXC}, 1
        s_add_u32 s46, s46, {sRR}
        s_mul_i32 s55, s46, {YROWS*128}
        s_min_u32 s44, {sW}, 3
        s_mul_i32 s45, {sW}, 5
        s_add_u32 s44, s44, s45
        s_lshl_b32 s44, s44, 7
        s_add_u32 s55, s55, s44
        s_add_u32 s55, s55, {WS_YP}
        s_cmp_lt_u32 {sW}, 3
        s_cselect_b32 s61, 0xffff, {sM8}
        s_mov_b32 s60, -1
        v_mov_b32 v24, 0
        v_mov_b32 v25, 0
        v_mov_b32 v26, 0
        v_mov_b32 v27, 0
        v_and_b32 v12, 7, v1
        v_and_b32 v13, 1, v3
        v_lshl_or_b32 v13, v13, 1, v21
        v_lshl_or_b32 v12, v12, 2, v13
        v_lshl_add_u32 v12, v12, 2, s59
        s_cmp_lg_u32 {sW}, 0
        s_cbranch_scc1 L_e_poll
        s_lshl_b32 s44, s46, 6
        v_add_u32 v8, s44, v44
        ds_read_u16 v56, v8 offset:{L_H}
        v_and_b32 v13, 7, v1
        v_lshlrev_b32 v13, 5, v13
        ds_read_b32 v53, v13 offset:{L_STAT+8}
        ds_read_b32 v54, v13 offset:{L_STAT+24}
        v_lshlrev_b32 v19, 9, v21
        v_lshl_or_b32 v19, v18, 2, v19
        s_waitcnt lgkmcnt(0)
        v_fma_f32 v53, -v50, v54, v53
        """)
        for n in (4, 2, 1):
            a(f"v_add_f32_dpp v53, v53, v53 row_ror:{n} {DPPF}")
        a(f"""
        v_mul_f32 v53, v53, v52
        v_mul_f32 v53, s58, v53
        v_exp_f32 v53, v53
        v_add_f32 v53, 1.0, v53
        v_rcp_f32 v53, v53
        """)
        self.round_bf16(50); self.round_bf16(51)
        a(f"v_add_f32 v51, {EPS}, v51")
        self.round_bf16(51)
        a("v_sqrt_f32 v51, v51")
        self.round_bf16(51)
        a("v_rcp_f32 v51, v51\nv_lshlrev_b32 v56, 16, v56\nv_sub_f32 v57, v56, v50")
        self.round_bf16(57)
        a("v_mul_f32 v57, v57, v51")
        self.round_bf16(57)
        a("v_add_f32 v56, v56, v57           ; h + LayerNorm(h)\nL_e_poll:\ns_mov_b64 exec, s[60:61]")
        self.poll(f"buffer_load_dwordx4 v[24:27], v9, {SWS}, s55 offen sc1", list(range(24, 28)), "f32", 40)
        a("s_mov_b64 exec, -1")
        self.stamp(11)
        for i in range(4):
            a(f"v_add_f32_dpp v{24+i}, v{24+i}, v{24+i} row_ror:8 {DPPF}")
        a(f"""
        s_cmp_lg_u32 {sW}, 0
        v_permlane16_swap_b32 v24, v26
        v_permlane16_swap_b32 v25, v27
        v_pk_add_f32 v[24:25], v[24:25], v[26:27]
        v_permlane32_swap_b32 v24, v25
        v_add_f32 v24, v24, v25
        ds_write_b32 v12, v24 offset:{L_RED3}
        s_waitcnt lgkmcnt(0)
        s_barrier
        s_cbranch_scc1 L_t1b_end
        ds_read_b32 v24, v19 offset:{L_RED3}
        ds_read_b32 v25, v19 offset:{L_RED3+128}
        ds_read_b32 v26, v19 offset:{L_RED3+256}
        ds_read_b32 v27, v19 offset:{L_RED3+384}
        s_cmp_lg_u32 s46, 0
        s_waitcnt lgkmcnt(0)
        v_pk_add_f32 v[24:25], v[24:25], v[26:27]
        v_add_f32 v24, v24, v25
        v_mov_b32 v25, v24
        v_permlane32_swap_b32 v24, v25
        v_add_f32 v24, v24, v25
        v_fma_f32 v24, v24, v53, v56
        v_cvt_pk_bf16_f32 v24, v24, v24
        s_mov_b32 exec_hi, 0
        buffer_store_short v24, v8, {SO}, 0 offen
        s_cbranch_scc1 L_t1b_noep
        s_mov_b32 exec_lo, 1
        buffer_store_dword {vT32}, v9, {SWS}, 0 offen offset:{WS_EPOCH} sc1
        L_t1b_noep:
        """)
        self.stamp(12)
        a("L_t1b_end:")
        self.exit()
        if self.helper:
            a("L_helper:")
            self.ptr(20, 80); self.srd(20, 1376*1024)
            a(f"""
            s_cmp_lt_u32 {sRR}, 6
            s_cbranch_scc1 L_t1b_end
            s_sub_u32 s46, s46, {sRR}
            s_lshl_b32 s46, s46, 15
            s_sub_u32 s45, {sRR}, 6
            s_mul_i32 s45, s45, {3*32768}
            s_add_u32 s46, s46, s45
            s_add_u32 s47, s46, 65536
            v_lshlrev_b32 v4, 7, v0
            s_cmp_ge_u32 {sW}, 4
            s_waitcnt lgkmcnt(0)
            s_barrier
            buffer_load_dword v24, v4, {SD}, s46 offen {nt}
            s_cbranch_scc1 L_t1b_end
            buffer_load_dword v25, v4, {SD}, s47 offen {nt}
            """)
            self.exit()

    def ckv_issue(self, q):
        a = self.a
        a(f"s_add_u32 m0, s51, {32768*q}")
        for i in range(4):
            a(f"s_add_u32 s48, s{47 if q < 2 else 46}, {(q&1)*256+i*3072}\nbuffer_load_dwordx4 v{4+(i&1)}, {SC}, s48 offen offset:{i*1024} {self.nt} lds")

    def team2(self):
        a = self.a; nt = self.nt
        a("L_team2:")
        self.srd(16, 1 << 23); self.srd(20, 1 << 22); self.srd(24, WS_SIZE)
        a(f"""
        s_sub_u32 {sRR}, {sRR}, 16
        s_lshr_b32 s44, {sRR}, 1
        s_lshl_b32 {sH}, {sXC}, 3
        s_add_u32 {sH}, {sH}, s44
        s_and_b32 {sJ}, {sRR}, 1
        v_lshlrev_b32 v4, 1, v3
        v_xor_b32 v4, v4, v2
        v_lshlrev_b32 v4, 4, v4
        v_lshl_or_b32 v6, v3, 17, v4
        v_lshl_or_b32 v4, v3, 10, v4
        v_xor_b32 v5, 0x80, v4
        v_xor_b32 v7, 0x80, v6
        s_lshl_b32 s47, {sH}, 17
        s_lshl_b32 s44, {sW}, 14
        s_add_u32 s47, s47, s44
        s_lshl_b32 s3, {sJ}, 9
        s_and_b32 s3, s3, {512 if self.stagger else 0}
        s_add_u32 s47, s47, s3
        s_xor_b32 s46, s47, 512
        s_lshl_b32 s51, {sW}, 12
        s_add_u32 s51, s51, {TB}
        s_waitcnt lgkmcnt(0)
        s_load_dword {sT}, s[24:25], {WS_EPOCH}
        s_lshl_b32 s54, {sJ}, 14
        s_lshl_b32 s44, {sW}, 11
        s_add_u32 s54, s54, s44
        s_add_u32 s54, s54, {WS_QA}
        s_mul_i32 s44, {sW}, 2112
        v_add_u32 v18, s44, v9
        s_lshr_b32 s44, {sRR}, 2
        s_lshl_b32 s62, {sXC}, 2
        s_add_u32 s62, s62, s44
        s_and_b32 s63, {sRR}, 3
        s_lshl_b32 s45, {sXC}, 13
        s_add_u32 s45, s45, {WS_QP}
        v_lshlrev_b32 v8, 7, v1
        """)
        qloads = f"buffer_load_dwordx4 v[24:27], v9, {SWS}, s54 offen sc1\nbuffer_load_dwordx4 v[28:31], v9, {SWS}, s54 offen offset:1024 sc1"
        if self.pace >= 1:
            a(f"s_cmp_lg_u32 {sW}, 7\ns_cbranch_scc1 L_nowarm\nbuffer_load_dword v32, v8, {SWS}, s45 offen sc1\nL_nowarm:")
        if self.pace >= 3:
            a("s_waitcnt lgkmcnt(0)")
        if self.pace >= 2:
            a(qloads)
        a("s_waitcnt vmcnt(0) lgkmcnt(0)")
        if self.pace >= 2:
            a("s_barrier")
        self.stamp(1)
        self.ckv_issue(0)
        a("s_barrier")
        self.ckv_issue(1)
        self.tags()
        qwrite = f"ds_write_b128 v18, v[24:27] offset:{L_Q}\nds_write_b128 v18, v[28:31] offset:{L_Q+1056}\ns_waitcnt lgkmcnt(0)\ns_barrier"
        a(f"s_cmp_ge_u32 {sW}, 4\ns_cbranch_scc1 L_pv")
        a(f"""
        v_and_b32 v13, 7, v2
        v_lshlrev_b32 v13, 1, v13
        v_xor_b32 v13, v13, v3
        v_lshlrev_b32 v13, 4, v13
        v_lshl_or_b32 v13, v2, 8, v13
        s_lshl_b32 s44, {sW}, 13
        s_add_u32 s44, s44, {TB}
        v_add_u32 v13, s44, v13
        v_xor_b32 v14, 64, v13
        v_xor_b32 v15, 0x80, v13
        v_xor_b32 v16, 0xc0, v13
        v_mul_u32_u24 v17, 1056, v2
        v_lshl_add_u32 v17, v3, 4, v17
        s_xor_b32 s44, s3, 512
        v_add_u32 v58, s44, v17
        v_add_u32 v17, s3, v17
        s_lshl_b32 s44, {sW}, 2
        v_lshlrev_b32 v20, 4, v2
        v_add_u32 v19, s44, v20
        s_lshl_b32 s44, {sW}, 10
        v_add_u32 v21, s44, v9
        s_mov_b32 s55, {hex(SCALE2)}
        s_lshl_b32 s56, {sH}, 9
        s_lshl_b32 s44, {sJ}, 8
        s_add_u32 s56, s56, s44
        s_add_u32 s56, s56, {WS_ST}
        v_mov_b32 v56, 0x3f803f80
        """)
        def sreads(q):
            return "\n".join(f"ds_read_b128 {vr(64+((q*4+t)*2+u)*4)}, v{13+t} offset:{(q&1)*32768+u*4096}" for t in range(4) for u in range(2))
        for q in range(3):
            a(f"s_waitcnt vmcnt(4)\ns_barrier")
            if q == 2:
                for t in range(4): a(f"v_add_u32 v{13+t}, 0x10000, v{13+t}")
            a(sreads(q))
            if q < 2: self.ckv_issue(q + 2)
        st2 = "\ns_memrealtime s[68:69]" if self.prof else ""
        self.poll(qloads, list(range(24, 32)), "b16", 32, self.qsleep, first="s_waitcnt vmcnt(2)\ns_barrier\n" + sreads(3) + st2)
        self.stamp(3)
        a(qwrite)
        self.stamp(4)
        for t in range(8):
            a(f"ds_read_b128 {vr(192+4*t)}, v17 offset:{L_Q+64*t}")
        for t in range(16):
            if t < 8:
                a(f"ds_read_b128 {vr(192+4*(t+8))}, v58 offset:{L_Q+64*t}\ns_waitcnt lgkmcnt(8)")
            else:
                a(f"s_waitcnt lgkmcnt({15-t})")
            for u in range(2):
                self.mfma(40+4*u, 64+(t*2+u)*4, 192+4*t, t == 0)
        a("""
        v_max3_f32 v32, v40, v41, v42
        v_max3_f32 v32, v43, v44, v32
        v_max3_f32 v33, v45, v46, v47
        v_max_f32 v32, v32, v33
        """)
        self.cross_rows(32, 33, "v_max_f32")
        a(f"ds_write_b32 v19, v32 offset:{L_MX}\ns_waitcnt lgkmcnt(0)\ns_barrier")
        self.stamp(5)
        a(f"""
        ds_read_b128 v[32:35], v20 offset:{L_MX}
        s_waitcnt lgkmcnt(0)
        v_max3_f32 v32, v32, v33, v34
        v_max_f32 v32, v32, v35
        v_mul_f32 v36, s55, v32
        """)
        for i in range(8):
            a(f"v_fma_f32 v{40+i}, v{40+i}, s55, -v36")
        for i in range(8):
            a(f"v_exp_f32 v{40+i}, v{40+i}")
        for i in range(4):
            a(f"v_cvt_pk_bf16_f32 v{40+i}, v{40+2*i}, v{41+2*i}")
        a(f"""
        ds_write_b128 v21, v[40:43] offset:{L_P}
        s_cmp_lg_u32 {sW}, 0
        s_waitcnt lgkmcnt(0)
        s_barrier
        """)
        self.stamp(6)
        a("s_cbranch_scc1 L_c1")
        for s in range(1, 4):
            a(f"ds_read_b128 {vr(40+4*s)}, v9 offset:{L_P+1024*s}")
        a("v_mov_b32 v37, 0")
        for i in range(16):
            if i and i % 4 == 0: a(f"s_waitcnt lgkmcnt({3-i//4})")
            a(f"v_dot2c_f32_bf16 v37, v{40+i}, v56")
        self.cross_rows(37, 33, "v_add_f32")
        a(f"""
        v_xor_b32 v38, v36, {vT32}
        v_xor_b32 v39, v37, {vT32}
        s_mov_b64 exec, 0xffff
        buffer_store_dwordx4 v[36:39], v9, {SWS}, s56 offen sc1
        s_mov_b64 exec, -1
        """)
        self.stamp(7)
        a("s_branch L_c1")
        a("L_trsub:")
        for ct in range(8):
            for s in range(4):
                for h in range(2):
                    a(f"ds_read_b64_tr_b16 {vr(64+(ct*4+s)*4+2*h,2)}, v{48+ct} offset:{s*8192+h*4096}")
        a("s_setpc_b64 s[60:61]")
        a(f"""
        L_pv:
        s_sub_u32 s57, {sW}, 4
        v_lshrrev_b32 v12, 2, v1
        v_and_b32 v13, 7, v12
        v_lshlrev_b32 v13, 5, v13
        v_lshl_or_b32 v13, v12, 8, v13
        v_and_b32 v14, 3, v1
        v_lshl_or_b32 v13, v14, 3, v13
        s_lshl_b32 s44, s57, 15
        s_add_u32 s44, s44, {TB}
        v_add_u32 v48, s44, v13
        """)
        for ct in range(1, 8):
            a(f"v_xor_b32 v{48+ct}, {ct*32}, v48")
        a(f"""
        v_lshlrev_b32 v20, 4, v2
        v_lshl_or_b32 v20, v3, 18, v20
        s_lshl_b32 s55, {sJ}, 20
        s_lshr_b32 s44, s3, 8
        s_xor_b32 s44, s44, s57
        s_lshl_b32 s44, s44, 14
        s_lshl_b32 s45, {sH}, 8
        s_add_u32 s55, s55, s44
        s_add_u32 s55, s55, s45
        s_add_u32 s55, s55, {WS_OP}
        s_add_u32 s56, s55, 0x10000
        s_add_u32 s58, s55, 0x20000
        s_add_u32 s59, s55, 0x30000
        s_lshl_b32 s49, s63, 20
        s_lshl_b32 s44, s62, 8
        s_lshl_b32 s45, s57, 15
        s_add_u32 s49, s49, s44
        s_add_u32 s49, s49, s45
        s_lshl_b32 s52, s57, 13
        s_add_u32 s52, s52, {TB}
        s_mov_b32 s53, 0x07060302
        """)
        for q in range(3):
            a(f"s_waitcnt vmcnt(4)\ns_barrier")
            if q < 2:
                self.ckv_issue(q + 2)
                a(f"s_cmp_lg_u32 s57, {q}\ns_cbranch_scc1 L_pv_s{q}\ns_call_b64 s[60:61], L_trsub\nL_pv_s{q}:")
        self.poll(qloads, list(range(24, 32)), "b16", 32, self.qsleep, first="s_waitcnt vmcnt(2)\ns_barrier" + st2)
        self.stamp(3)
        a(qwrite)
        a(f"s_cmp_lt_u32 s57, 2\ns_cbranch_scc1 L_pv_s3\ns_call_b64 s[60:61], L_trsub\nL_pv_s3:")
        for hh in range(2):
            a(f"s_add_u32 m0, s52, {4096*hh}")
            for i in range(4):
                a(f"s_add_u32 s48, s49, {hh*64*8192+i*(8192-1024)}\nbuffer_load_dwordx4 v{6+(i&1)}, {SD}, s48 offen offset:{i*1024} {nt} lds")
        a("s_waitcnt lgkmcnt(0)\ns_barrier\ns_barrier")
        self.stamp(6)
        for s in range(4):
            a(f"ds_read_b128 {vr(192+4*s)}, v9 offset:{L_P+1024*s}")
        def pack(pr):
            return ([f"v_perm_b32 v{240+4*r+pr}, v{212+8*pr+r}, v{208+8*pr+r}, s53" for r in range(4)] +
                    [f"v_bfi_b32 v{240+4*r+pr}, {sM16}, {vT16}, v{240+4*r+pr}" for r in range(4)])
        pend = []
        for pr in range(4):
            n = 0
            for s in range(4):
                if pr == 0: a(f"s_waitcnt lgkmcnt({3-s})")
                for k in range(2):
                    ct = 2*pr + k
                    self.mfma(208+4*ct, 192+4*s, 64+(ct*4+s)*4, s == 0)
                    n += 1
                    if pend: a(pend.pop(0))
            assert not pend
            if pr >= 1: pend = pack(pr - 1)
        for x in pend: a(x)
        for x in pack(3): a(x)
        for r, so in enumerate(("s55", "s56", "s58", "s59")):
            a(f"buffer_store_dwordx4 {vr(240+4*r)}, v20, {SWS}, {so} offen sc1")
        self.stamp(7)
        a(f"""
        L_c1:
        v_lshrrev_b32 v12, 2, v1
        v_and_b32 v13, 7, v12
        v_xor_b32 v13, {sW}, v13
        v_lshlrev_b32 v13, 5, v13
        v_lshl_or_b32 v13, v12, 8, v13
        v_and_b32 v14, 3, v1
        v_lshl_or_b32 v12, v14, 3, v13
        s_lshl_b32 s44, {sW}, 5
        v_lshl_add_u32 v13, v3, 2, s44
        v_and_b32 v14, 1, v2
        v_cmp_eq_u32 vcc, 1, v14
        v_mov_b32 v14, 0xffff
        v_mov_b32 v15, 0xffff0000
        v_cndmask_b32 v14, v14, v15, vcc
        v_lshrrev_b32 v15, 1, v2
        """)
        for r in range(4):
            a(f"v_cmp_eq_u32 vcc, {r}, v15\nv_cndmask_b32 v{60+r}, 0, v14, vcc")
        a(f"""
        v_lshlrev_b32 v17, 4, v3
        s_lshl_b32 s44, {sW}, 9
        v_lshl_add_u32 v16, v2, 5, s44
        v_add_u32 v16, v16, v17
        v_lshlrev_b32 v18, 3, v1
        v_lshlrev_b32 v19, 2, v1
        s_lshl_b32 s48, s62, 16
        s_lshl_b32 s44, s63, 14
        s_lshl_b32 s45, {sW}, 11
        s_add_u32 s48, s48, s44
        s_add_u32 s48, s48, s45
        s_add_u32 s48, s48, {WS_OP}
        s_lshl_b32 s56, s62, 11
        s_lshl_b32 s44, s63, 9
        s_lshl_b32 s45, {sW}, 6
        s_add_u32 s56, s56, s44
        s_add_u32 s56, s56, s45
        s_add_u32 s56, s56, {WS_CP}
        s_add_u32 s58, s56, {WS_FAR}
        s_mov_b32 s52, 0x10001
        s_mov_b32 s53, 0x10001
        s_lshl_b32 s57, s62, 4
        s_add_u32 s57, s57, {WS_ST}
        v_lshlrev_b32 v57, 9, v1
        """)
        if self.obar: a("s_barrier")
        oloads = f"buffer_load_dwordx4 v[24:27], v9, {SWS}, s48 offen sc1\nbuffer_load_dwordx4 v[28:31], v9, {SWS}, s48 offen offset:1024 sc1"
        a(f"s_cmp_lg_u32 {sW}, 0\ns_cbranch_scc1 L_opoll")
        self.poll_st("v57", "s57", 44, extra=oloads)
        self.stamp(8)
        a("v_mov_b32 v46, v44")
        self.wave_reduce(46, 47, "v_max_f32")
        a("v_sub_f32 v44, v44, v46\nv_exp_f32 v44, v44\nv_mul_f32 v45, v44, v45")
        self.wave_reduce(45, 47, "v_add_f32")
        a(f"""
        v_rcp_f32 v45, v45
        v_mul_f32 v44, v44, v45
        v_cvt_pk_bf16_f32 v44, v44, v44
        ds_write_b32 v19, v44 offset:{L_WN}
        s_mov_b32 {sSPIN}, {self.spin}
        s_branch L_ochk
        L_opoll:
        """)
        self.poll(oloads + "\nL_ochk:", list(range(24, 32)), "b16", 32, self.osleep)
        self.stamp(9)
        a(f"s_waitcnt lgkmcnt(0)\ns_barrier\nds_read_b32 v58, v13 offset:{L_WN}\nds_read_b32 v59, v13 offset:{L_WN+16}")
        a("s_waitcnt lgkmcnt(0)")
        for k in range(2):
            for r in range(4):
                a(f"v_and_b32 v{64+4*k+r}, v{58+k}, v{60+r}")
        self.mfma(112, 64, 24, True); self.mfma(112, 68, 28, False)
        for t in range(4):
            for h in range(2):
                a(f"ds_read_b64_tr_b16 {vr(80+4*t+2*h,2)}, v12 offset:{TB+t*8192+h*4096}")
        a(f"""
        s_mov_b32 exec_hi, 0
        s_cmp_lg_u32 {sW}, 0
        ds_write_b128 v16, v[112:115] offset:{L_CCP}
        s_mov_b32 exec_hi, -1
        s_waitcnt lgkmcnt(0)
        s_barrier
        s_cbranch_scc1 L_c1_join2
        """)
        for k in range(8):
            a(f"ds_read_b64 {vr(32+2*k,2)}, v18 offset:{L_CCP+512*k}")
        a(f"""
        s_waitcnt lgkmcnt(4)
        v_pk_add_f32 v[32:33], v[32:33], v[34:35]
        v_pk_add_f32 v[36:37], v[36:37], v[38:39]
        v_pk_add_f32 v[32:33], v[32:33], v[36:37]
        s_waitcnt lgkmcnt(0)
        v_pk_add_f32 v[40:41], v[40:41], v[42:43]
        v_pk_add_f32 v[44:45], v[44:45], v[46:47]
        v_pk_add_f32 v[32:33], v[32:33], v[40:41]
        v_pk_add_f32 v[32:33], v[32:33], v[44:45]
        v_cvt_pk_bf16_f32 v32, v32, v33
        ds_write_b32 v19, v32 offset:{L_CC}
        s_waitcnt lgkmcnt(0)
        L_c1_join2:
        s_barrier
        """)
        for t in range(4):
            a(f"ds_read_b128 {vr(32+4*t)}, v17 offset:{L_CC+64*t}")
        for t in range(4):
            a(f"s_waitcnt lgkmcnt({3-t})")
            self.mfma(116, 80+4*t, 32+4*t, t == 0)
        a("s_mov_b64 exec, s[52:53]")
        for i in range(4):
            a(f"v_bfi_b32 v{116+i}, {sM8}, {vT8}, v{116+i}")
        a(f"buffer_store_dwordx4 v[116:119], v17, {SWS}, s56 offen\nbuffer_store_dwordx4 v[116:119], v17, {SWS}, s58 offen sc1")
        self.stamp(10)
        self.exit()

    def build(self):
        a = self.a
        self.stamp(0)
        self.ptr(8, 16); self.ptr(4, 0); self.ptr(12, 24); self.ptr(24, 104)
        if self.prof:
            for i in range(1, 16): a(f"s_mov_b32 s{64+2*i}, 0")
        a(f"""
        v_lshrrev_b32 v2, 6, v0
        v_and_b32 v1, 63, v0
        s_and_b32 {sXC}, s2, 7
        v_readfirstlane_b32 {sW}, v2
        s_lshr_b32 {sRR}, s2, 3
        v_and_b32 v2, 15, v1
        v_lshrrev_b32 v3, 4, v1
        v_lshlrev_b32 v9, 4, v1
        s_cmp_lt_u32 s2, 128
        s_cbranch_scc1 L_t1
        s_cmp_ge_u32 s2, 256
        s_cbranch_scc1 L_end0
        s_getpc_b64 s[44:45]
        L_pc:
        v_lshlrev_b32 v4, 7, v0
        v_min_u32 v4, L_code_end-L_pc-4, v4
        s_cmp_ge_u32 {sW}, 2
        s_cbranch_scc1 L_nopf
        global_load_dword v8, v4, s[44:45]
        L_nopf:
        """)
        self.ptr(16, 8); self.ptr(20, 32)
        a("s_branch L_team2\nL_end0:\ns_endpgm")
        self.team1()
        self.team1a()
        a(".p2align 12")
        self.team2()
        self.team1b()
        if self.prof:
            a("L_exit:\ns_mov_b64 exec, -1\ns_waitcnt vmcnt(0)")
            self.stamp(15)
            a("s_waitcnt lgkmcnt(0)\nv_mov_b32 v4, 0")
            for i in range(16): a(f"v_writelane_b32 v4, s{64+2*i}, {i}")
            a(f"""
            s_lshl_b32 s44, s2, 3
            s_add_u32 s44, s44, {sW}
            s_lshl_b32 s44, s44, 6
            s_add_u32 s44, s44, {WS_PROF}
            v_lshlrev_b32 v5, 2, v1
            s_mov_b64 exec, 0xffff
            buffer_store_dword v4, v5, {SWS}, s44 offen
            s_endpgm
            """)
        a("L_code_end:")
        ref = open(REF).read()
        head = ref.split(f"{NAME}_kernel:\n")[0].replace("grid=(2,1,1) block=(256,1,1) lds=0", f"grid=(256,1,1) block=(512,1,1) lds={LDS_SIZE}")
        head = head.replace(".text\n", ".text\n.p2align 12\n.fill 832, 4, 0xbf810000\n", 1)
        tail = ".section .rodata" + ref.split(".section .rodata")[1]
        return head + f"{NAME}_kernel:\n" + a.finish() + tail + "\n"


if __name__ == "__main__":
    open(f"cdna_kernels/{NAME}.s", "w").write(Gen().build())
    open("k_prof.s", "w").write(Gen(prof=True, spin=1 << 14).build())
```

```python
import sys
sys.path.insert(0, 'gen')
import gen3 as G
def make(karg, base, stride, op):
    s = G.Gen().build()
    name = G.NAME + "_kernel:\n"
    acc = {"ld": "buffer_load_dword v61, v60, s[88:91], s92 offen", "ldnt": "buffer_load_dword v61, v60, s[88:91], s92 offen nt",
           "st": "buffer_store_dwordx4 v[64:67], v60, s[88:91], s92 offen sc1", "none": "s_nop 0"}[op]
    pre = f"""    s_memrealtime s[96:97]
    s_load_dwordx2 s[88:89], s[0:1], {karg}
    s_mov_b32 s90, 0x800000
    s_mov_b32 s91, 0x20000
    s_mov_b32 s93, 0
    v_and_b32 v60, 7, v0
    v_lshlrev_b32 v60, 4, v60
    v_readfirstlane_b32 s99, v0
    s_waitcnt lgkmcnt(0)
    s_cmp_lg_u32 s2, 64
    s_cbranch_scc1 L_dg_wait
    s_cmp_lg_u32 s99, 0
    s_cbranch_scc1 L_dg_wait
    s_mov_b32 s92, {base - stride}
    {acc}
    s_waitcnt vmcnt(0)
    s_memrealtime s[94:95]
    s_waitcnt lgkmcnt(0)
    s_mov_b32 s93, s94
    s_mov_b32 s98, 16
L_dg_m:
    s_add_u32 s92, s92, {stride}
    {acc}
    s_waitcnt vmcnt(0)
    s_sub_u32 s98, s98, 1
    s_cmp_lg_u32 s98, 0
    s_cbranch_scc1 L_dg_m
    s_memrealtime s[94:95]
    s_waitcnt lgkmcnt(0)
    s_sub_u32 s93, s94, s93
L_dg_wait:
    s_add_u32 s98, s96, 2000
L_dg_w2:
    s_memrealtime s[94:95]
    s_waitcnt lgkmcnt(0)
    s_sub_u32 s99, s94, s98
    s_cmp_lt_i32 s99, 0
    s_cbranch_scc1 L_dg_w2
"""
    s = s.replace(name, name + pre, 1)
    s = s.replace("L_t1b_noep:\n", """    s_lshl_b32 s93, s93, 2
    s_add_u32 s98, s96, s93
    s_add_u32 s98, s98, 6000
L_diag_hold:
    s_memrealtime s[94:95]
    s_waitcnt lgkmcnt(0)
    s_sub_u32 s99, s94, s98
    s_cmp_lt_i32 s99, 0
    s_cbranch_scc1 L_diag_hold
L_t1b_noep:
""")
    return s
V = {"none": (8, 0x10000, 0x5100, "none"), "ckv": (8, 0x10000, 0x5100, "ld"), "wo": (40, 0x10000, 0x5100, "ld"), "ws": (104, 0x600000, 0x5100, "ld"),
     "wsst": (104, 0x600000, 0x5100, "st"), "ckvfar": (8, 0x80000, 0x71100, "ld")}
for k, v in V.items():
    open(f"ds_{k}.s", "w").write(make(*v))
```

```python
import sys, importlib
sys.path.insert(0, 'gen')
def amplify(G, kw, slot="s46", what="span"):
    s = G.Gen(**kw).build()
    name = G.NAME + "_kernel:\n"
    s = s.replace(name, name + "    s_memrealtime s[94:95]\n", 1)
    red = lambda op, v: "".join(f"    s_nop 1\n    {op}_dpp {v}, {v}, {v} row_ror:{n} row_mask:0xf bank_mask:0xf\n" for n in (8, 4, 2, 1)) + \
        f"    v_mov_b32 v63, {v}\n    s_nop 1\n    v_permlane16_swap_b32 {v}, v63\n    {op} {v}, {v}, v63\n"
    fin = {"span": "    s_sub_u32 s93, s93, s92\n", "skew": "    s_sub_u32 s93, s87, s92\n"}[what]
    code = f"""L_t1b_noep:
    s_memrealtime s[84:85]
    s_load_dwordx2 s[88:89], s[0:1], 96
    s_mov_b32 s90, 256
    s_mov_b32 s91, 0x20000
    s_mov_b64 exec, 1
    s_waitcnt lgkmcnt(0)
    s_and_b32 s86, s84, 0x7fff
    s_and_b32 s87, s94, 0x7fff
    s_lshl_b32 s87, s87, 16
    s_or_b32 s86, s86, s87
    s_bitset1_b32 s86, 31
    v_mov_b32 v60, s86
    s_lshl_b32 s92, {slot}, 2
    buffer_store_dword v60, v9, s[88:91], s92 offen offset:128 sc1
    s_cmp_lg_u32 {slot}, 0
    s_cbranch_scc1 L_amp_done
    s_mov_b64 exec, -1
    v_and_b32 v61, 31, v1
    v_lshlrev_b32 v61, 2, v61
    s_mov_b32 s93, 100000
L_amp_poll:
    buffer_load_dword v60, v61, s[88:91], 0 offen offset:128 sc1
    s_sub_u32 s93, s93, 1
    s_cbranch_scc1 L_amp_done
    s_waitcnt vmcnt(0)
    v_cmp_eq_u32 vcc, 0, v60
    s_cbranch_vccnz L_amp_poll
    s_sub_u32 s86, s94, 4096
    v_lshrrev_b32 v61, 16, v60
    v_subrev_u32 v61, s86, v61
    v_and_b32 v61, 0x7fff, v61
    v_subrev_u32 v60, s86, v60
    v_and_b32 v60, 0x7fff, v60
    v_mov_b32 v62, v61
{red("v_min_u32", "v61")}{red("v_max_u32", "v60")}{red("v_max_u32", "v62")}    s_nop 1
    v_readfirstlane_b32 s92, v61
    v_readfirstlane_b32 s93, v60
    v_readfirstlane_b32 s87, v62
    s_nop 1
{fin}    s_lshl_b32 s93, s93, 3
    s_add_u32 s92, s92, s93
    s_add_u32 s92, s92, s86
    s_add_u32 s92, s92, 4000
L_amp_hold:
    s_memrealtime s[84:85]
    s_waitcnt lgkmcnt(0)
    s_sub_u32 s93, s84, s92
    s_cmp_lt_i32 s93, 0
    s_cbranch_scc1 L_amp_hold
L_amp_done:
"""
    assert s.count("L_t1b_noep:\n") == 1
    return s.replace("L_t1b_noep:\n", code)
if __name__ == "__main__":
    G = importlib.import_module(sys.argv[1])
    for i, cfg in enumerate(sys.argv[2:]):
        what = "span"
        if cfg.startswith("skew:"): what, cfg = "skew", cfg[5:]
        open(f"amp{i}.s", "w").write(amplify(G, eval(cfg), what=what))
```

```python
import sys, importlib
sys.path.insert(0, 'gen')
def amplify(G, kw, slot="s46", what="span"):
    s = G.Gen(**kw).build()
    name = G.NAME + "_kernel:\n"
    s = s.replace(name, name + "    s_memrealtime s[94:95]\n", 1)
    red = lambda op, v: "".join(f"    s_nop 1\n    {op}_dpp {v}, {v}, {v} row_ror:{n} row_mask:0xf bank_mask:0xf\n" for n in (8, 4, 2, 1)) + \
        f"    v_mov_b32 v63, {v}\n    s_nop 1\n    v_permlane16_swap_b32 {v}, v63\n    {op} {v}, {v}, v63\n"
    endval = {"minvotes": "    s_add_u32 s84, s96, s97\n    s_sub_u32 s84, 8, s84\n    s_mul_i32 s84, s84, 100\n",
              "wrong": "    s_getreg_b32 s84, hwreg(20, 2, 1)\n    s_lshr_b32 s85, s100, 13\n    s_xor_b32 s84, s84, s85\n"}.get(what)
    if endval:
        tail = {"minvotes": red("v_max_u32", "v60"),
                "wrong": red("v_add_u32", "v60") + "    v_sub_u32 v61, 32, v60\n    v_min_u32 v60, v60, v61\n    v_mul_u32_u24 v60, 25, v60\n"}[what]
        code = f"""L_t1b_noep:
    s_load_dwordx2 s[88:89], s[0:1], 96
    s_mov_b32 s90, 256
    s_mov_b32 s91, 0x20000
    s_mov_b64 exec, 1
    s_waitcnt lgkmcnt(0)
{endval}    s_bitset1_b32 s84, 31
    v_mov_b32 v60, s84
    s_lshl_b32 s92, {slot}, 2
    buffer_store_dword v60, v9, s[88:91], s92 offen offset:128 sc1
    s_cmp_lg_u32 {slot}, 0
    s_cbranch_scc1 L_amp_done
    s_mov_b64 exec, -1
    v_and_b32 v61, 31, v1
    v_lshlrev_b32 v61, 2, v61
    s_mov_b32 s93, 100000
L_amp_poll:
    buffer_load_dword v60, v61, s[88:91], 0 offen offset:128 sc1
    s_sub_u32 s93, s93, 1
    s_cbranch_scc1 L_amp_done
    s_waitcnt vmcnt(0)
    v_cmp_eq_u32 vcc, 0, v60
    s_cbranch_vccnz L_amp_poll
    v_and_b32 v60, 0x7fff, v60
{tail}    s_nop 1
    v_readfirstlane_b32 s93, v60
    s_nop 1
    s_lshl_b32 s93, s93, 3
    s_add_u32 s92, s94, s93
    s_add_u32 s92, s92, 4000
L_amp_hold:
    s_memrealtime s[84:85]
    s_waitcnt lgkmcnt(0)
    s_sub_u32 s93, s84, s92
    s_cmp_lt_i32 s93, 0
    s_cbranch_scc1 L_amp_hold
L_amp_done:
"""
        return s.replace("L_t1b_noep:\n", code)
    fin = {"span": "    s_sub_u32 s93, s93, s92\n", "skew": "    s_sub_u32 s93, s87, s92\n"}[what]
    code = f"""L_t1b_noep:
    s_memrealtime s[84:85]
    s_load_dwordx2 s[88:89], s[0:1], 96
    s_mov_b32 s90, 256
    s_mov_b32 s91, 0x20000
    s_mov_b64 exec, 1
    s_waitcnt lgkmcnt(0)
    s_and_b32 s86, s84, 0x7fff
    s_and_b32 s87, s94, 0x7fff
    s_lshl_b32 s87, s87, 16
    s_or_b32 s86, s86, s87
    s_bitset1_b32 s86, 31
    v_mov_b32 v60, s86
    s_lshl_b32 s92, {slot}, 2
    buffer_store_dword v60, v9, s[88:91], s92 offen offset:128 sc1
    s_cmp_lg_u32 {slot}, 0
    s_cbranch_scc1 L_amp_done
    s_mov_b64 exec, -1
    v_and_b32 v61, 31, v1
    v_lshlrev_b32 v61, 2, v61
    s_mov_b32 s93, 100000
L_amp_poll:
    buffer_load_dword v60, v61, s[88:91], 0 offen offset:128 sc1
    s_sub_u32 s93, s93, 1
    s_cbranch_scc1 L_amp_done
    s_waitcnt vmcnt(0)
    v_cmp_eq_u32 vcc, 0, v60
    s_cbranch_vccnz L_amp_poll
    s_sub_u32 s86, s94, 4096
    v_lshrrev_b32 v61, 16, v60
    v_subrev_u32 v61, s86, v61
    v_and_b32 v61, 0x7fff, v61
    v_subrev_u32 v60, s86, v60
    v_and_b32 v60, 0x7fff, v60
    v_mov_b32 v62, v61
{red("v_min_u32", "v61")}{red("v_max_u32", "v60")}{red("v_max_u32", "v62")}    s_nop 1
    v_readfirstlane_b32 s92, v61
    v_readfirstlane_b32 s93, v60
    v_readfirstlane_b32 s87, v62
    s_nop 1
{fin}    s_lshl_b32 s93, s93, 3
    s_add_u32 s92, s92, s93
    s_add_u32 s92, s92, s86
    s_add_u32 s92, s92, 4000
L_amp_hold:
    s_memrealtime s[84:85]
    s_waitcnt lgkmcnt(0)
    s_sub_u32 s93, s84, s92
    s_cmp_lt_i32 s93, 0
    s_cbranch_scc1 L_amp_hold
L_amp_done:
"""
    assert s.count("L_t1b_noep:\n") == 1
    return s.replace("L_t1b_noep:\n", code)
if __name__ == "__main__":
    G = importlib.import_module(sys.argv[1])
    for i, cfg in enumerate(sys.argv[2:]):
        what = "span"
        if ":" in cfg.split("(")[0]: what, cfg = cfg.split(":", 1)
        open(f"amp{i}.s", "w").write(amplify(G, eval(cfg), what=what))
```
